```python
import torch

def _softmax(x, axis=-1):
    return torch.softmax(x, dim=axis)
def _gelu(x):
    return torch.nn.functional.gelu(x, approximate="tanh")
def _silu(x):
    return torch.nn.functional.silu(x)
def _sigmoid(x):
    return torch.sigmoid(x)
def _layernorm(x, axis=-1, eps=1e-5):
    m = x.mean(dim=axis, keepdim=True)
    v = x.var(dim=axis, keepdim=True, unbiased=False)
    return (x - m) / torch.sqrt(v + eps)
def _scatter_add(tgt, idx, src, axis=0):
    return tgt.clone().index_add_(axis, idx, src)
def _segment_sum(src, seg, n):
    out = torch.zeros((n,) + src.shape[1:], dtype=src.dtype)
    return out.index_add_(0, seg, src)
def _pad(x, pw):
    flat = tuple(v for pair in reversed(pw) for v in pair)
    return torch.nn.functional.pad(x, flat)

kernel_name = 'standalone__mha_block_cached__near_ridge'

def setup_inputs():

    _w = (lambda a: (lambda t: t.to(torch.bfloat16) if t.is_floating_point() else t)(torch.as_tensor(a)))
    B, Sq, D = 8, 144, 448
    H, Sk, Dh = 16, 2048, 256
    return {
        "x": _w((lambda *s: torch.randn(*s, dtype=torch.bfloat16) * 0.8)(B, Sq, D)),
        "k_cache": _w((lambda *s: torch.randn(*s, dtype=torch.bfloat16) * 0.8)(B, H, Sk, Dh)),
        "v_cache": _w((lambda *s: torch.randn(*s, dtype=torch.bfloat16) * 0.05)(B, H, Sk, Dh)),
        "wq": _w((lambda *s: torch.randn(*s, dtype=torch.bfloat16) * 0.8)(D, H * Dh) * (D ** -0.5)),
        "wo": _w((lambda *s: torch.randn(*s, dtype=torch.bfloat16) * 0.05)(H * Dh, D) * ((H * Dh) ** -0.5)),
    }

def reference(x, k_cache, v_cache, wq, wo):
    B, Sq, D = x.shape
    H, Dh = 16, 256
    q = (lambda x, *d: x.permute(*d))((x @ wq).reshape(B, Sq, H, Dh), 0, 2, 1, 3)
    scores = torch.einsum("bhqd,bhkd->bhqk", q, k_cache) * (Dh ** -0.5)
    p = _softmax(scores, axis=-1)
    o = torch.einsum("bhqk,bhkd->bhqd", p, v_cache)
    return (lambda x, *d: x.permute(*d))(o, 0, 2, 1, 3).reshape(B, Sq, H * Dh) @ wo
```

```python
import re, sys

def regs_of(tok):
    tok = tok.strip()
    tok = tok.lstrip('-')
    m = re.match(r'^abs\((.*)\)$', tok)
    if m: tok = m.group(1)
    m = re.match(r'^([vas])\[(\d+):(\d+)\]$', tok)
    if m: return {(m.group(1), i) for i in range(int(m.group(2)), int(m.group(3)) + 1)}
    m = re.match(r'^([vas])(\d+)$', tok)
    if m: return {(m.group(1), int(m.group(2)))}
    if tok == 'vcc': return {('s', 106), ('s', 107)}
    if tok == 'exec': return {('s', 126), ('s', 127)}
    if tok == 'm0': return {('s', 124)}
    return set()

TRANS = ('v_exp_f32', 'v_log_f32', 'v_rcp_f32', 'v_rsq_f32', 'v_sqrt_f32', 'v_sin_f32', 'v_cos_f32')

class I:
    def __init__(s, text, ln):
        s.text = text; s.ln = ln
        t = text.split(';')[0].strip()
        parts = t.split(None, 1)
        s.op = parts[0]
        ops = []
        if len(parts) > 1:
            cur = ''; depth = 0
            for ch in parts[1]:
                if ch in '[(': depth += 1
                if ch in '])': depth -= 1
                if ch == ',' and depth == 0: ops.append(cur.strip()); cur = ''
                else: cur += ch
            ops.append(cur.strip())
        s.mods = ''
        if ops:
            l = ops[-1].split(None, 1)
            ops[-1] = l[0]
            if len(l) > 1: s.mods = l[1]
        s.ops = ops
        op = s.op
        s.mfma = op.startswith('v_mfma')
        s.valu = op.startswith('v_') and not s.mfma
        s.trans = op.replace('_e32', '').replace('_e64', '') in TRANS
        s.salu = op.startswith('s_')
        s.ds = op.startswith('ds_')
        s.vmem = op.startswith('buffer_') or op.startswith('global_')
        s.lds_dma = s.vmem and ' lds' in (' ' + s.mods)
        s.defs = set(); s.uses = set(); s.srcC = set(); s.srcAB = set(); s.stdata = set()
        R = [regs_of(o) for o in ops]
        if s.mfma:
            s.defs = R[0]; s.srcAB = R[1] | R[2]; s.srcC = R[3]; s.uses = s.srcAB | s.srcC
            s.passes = 4 if '16x16x32' in op else 8
        elif s.valu:
            if op.startswith('v_cmp'):
                s.defs = R[0]; s.uses = set().union(*R[1:])
            elif op.startswith('v_permlane') and 'swap' in op:
                s.defs = R[0] | R[1]; s.uses = R[0] | R[1]
            elif op.startswith('v_add_co') or op.startswith('v_addc_co') or op.startswith('v_sub_co'):
                s.defs = R[0] | R[1]; s.uses = set().union(*R[2:])
            elif op.startswith('v_fmac') or op.startswith('v_pk_fmac'):
                s.defs = R[0]; s.uses = set().union(*R)
            elif op == 'v_nop':
                pass
            else:
                s.defs = R[0]; s.uses = set().union(*R[1:]) if len(R) > 1 else set()
                if op.startswith('v_cndmask') and len(R) == 3: s.uses |= regs_of('vcc')
        elif s.ds:
            if op.startswith('ds_read') or op.startswith('ds_bpermute') or op.startswith('ds_swizzle'):
                s.defs = R[0]; s.uses = set().union(*R[1:])
            else:
                s.uses = set().union(*R); s.stdata = set().union(*R[1:])
        elif s.vmem:
            if op in ('buffer_wbl2', 'buffer_inv'):
                pass
            elif s.lds_dma:
                s.uses = set().union(*R) | regs_of('m0')
            elif 'load' in op:
                s.defs = R[0]; s.uses = set().union(*R[1:])
            else:
                s.uses = set().union(*R); s.stdata = R[0] if op.startswith('buffer_') else R[1]
                if 'atomic' in op and 'sc0' in s.mods: s.defs = R[0]
        elif s.salu:
            if op.startswith('s_cmp') or op.startswith('s_cbranch') or op in ('s_branch', 's_barrier', 's_waitcnt', 's_nop', 's_endpgm', 's_sleep', 's_setprio'):
                s.uses = set().union(*R) if R else set()
                if op.startswith('s_cbranch_vcc'): s.uses |= regs_of('vcc')
            else:
                s.defs = R[0] if R else set(); s.uses = set().union(*R[1:]) if len(R) > 1 else set()
                if 'saveexec' in op: s.defs |= regs_of('exec')
        s.states = 1
        if op == 's_nop': s.states = int(ops[0], 0) + 1

def need(p, c):
    n = 0; why = ''
    def up(k, w):
        nonlocal n, why
        if k > n: n = k; why = w
    vdefs = {r for r in p.defs if r[0] in 'va'}
    sdefs = {r for r in p.defs if r[0] == 's'}
    if p.mfma:
        k = {4: (0, 6, 8, 3), 8: (0, 10, 12, 7)}[p.passes]
        if c.mfma:
            if c.srcC & p.defs:
                if c.srcC == p.defs and c.passes == p.passes: pass
                else: up(k[1], 'mfma D->C partial')
            if c.srcAB & p.defs: up(k[2], 'mfma D->AB')
            if (c.defs & p.defs) and not (c.srcC == p.defs): up(k[2], 'mfma D->D WAW (conservative)')
        elif c.valu or c.ds or c.vmem:
            if (c.uses | c.defs) & p.defs: up(k[2], 'mfma D->valu/mem')
            if c.valu and (c.defs & p.srcC): up(k[3], 'mfma C WAR')
    if p.valu:
        if c.mfma and (c.uses & vdefs): up(2, 'valu->mfma')
        if c.op.startswith('v_permlane') and (c.uses & vdefs): up(2, 'valu->permlane')
        if (c.op.startswith('v_readfirstlane') or c.op.startswith('v_readlane')) and (c.uses & vdefs): up(1, 'valu->readlane')
        if p.trans and c.valu and not c.trans and (c.uses & vdefs): up(1, 'trans->valu')
        if p.trans and c.mfma and (c.uses & vdefs): up(2, 'trans->mfma')
        if sdefs:
            if c.vmem and (c.uses & sdefs): up(5, 'valu sgpr->vmem')
            if c.valu and (c.uses & sdefs): up(2, 'valu sgpr->valu')
        if 'dpp' in c.text and (c.uses & vdefs): up(2, 'valu->dpp')
        if (regs_of('exec') & p.defs) and c.mfma: up(4, 'exec->mfma')
    if p.salu and (('s', 124) in p.defs) and c.lds_dma: up(1, 'm0->dma')
    if p.vmem and p.stdata and len(p.stdata) > 2 and (c.defs & p.stdata):
        up(2 if c.valu else 1, 'store data WAR')
    return n, why

def check_seq(seq, out):
    bad = 0
    for j, c in enumerate(seq):
        dist = 0
        for i in range(j - 1, max(-1, j - 24), -1):
            p = seq[i]
            n, why = need(p, c)
            if n > dist:
                key = (p.ln, c.ln)
                if key not in out:
                    out[key] = f"HAZARD {why}: need {n} have {dist}\n   L{p.ln}: {p.text}\n   L{c.ln}: {c.text}"
                bad += 1
            dist += p.states
            if dist >= 20: break
    return bad

def check(text):
    ins = []; labels = {}
    for ln, line in enumerate(text.split('\n'), 1):
        t = line.split(';')[0].strip()
        if not t or t.startswith('.'): continue
        if t.endswith(':'):
            labels[t[:-1]] = len(ins); continue
        ins.append(I(t, ln))
    out = {}
    seg = []
    for x in ins:
        seg.append(x)
        if x.op in ('s_branch', 's_endpgm'):
            check_seq(seg, out); seg = []
    check_seq(seg, out)
    for k, x in enumerate(ins):
        if x.op.startswith('s_cbranch') or x.op == 's_branch':
            tgt = labels.get(x.ops[0])
            if tgt is None: continue
            lo = max(0, k - 24)
            pre = ins[lo:k + 1]
            for q in range(len(pre) - 2, -1, -1):
                if pre[q].op in ('s_branch', 's_endpgm'):
                    pre = pre[q + 1:]; break
            post = []
            for y in ins[tgt:tgt + 24]:
                post.append(y)
                if y.op in ('s_branch', 's_endpgm'): break
            check_seq(pre + post, out)
    return list(out.values())

if __name__ == '__main__':
    r = check(open(sys.argv[1]).read())
    for x in r: print(x)
    print(len(r), "hazards")
```

```python
import sys, struct, math
sys.path.insert(0, 'gen')
from hazard import check

P = dict(out='standalone__mha_block_cached__near_ridge.s', stamps=0, nt=1)
for a in sys.argv[1:]:
    k, v = a.split('='); P[k] = v if k == 'out' else int(v)

def f2h(x): return '0x%08x' % struct.unpack('<I', struct.pack('<f', x))[0]
KN = "standalone__mha_block_cached__near_ridge_kernel"
K2N = "mha_reduce_kernel"
SLOT, PIECE, HALF = 33792, 1056, 16896
SPARE = 4 * SLOT
LDS = SPARE + 8192
YSZ = 9 * 14 * 1024
STOFF = 256 * YSZ
WS = 536870912
CS = 0.0625 * math.log2(math.e)
THR = 8.0

A = []
def e(s): A.append(s)
def vr(b, n=4): return f"v[{b}:{b+n-1}]"
def ar(b, n=4): return f"a[{b}:{b+n-1}]"
MF = "v_mfma_f32_16x16x32_bf16"
NT_ = " nt" if P['nt'] else ""

sK, sV, sWQ, sWO, sX, sY, sST = 4, 8, 12, 16, 20, 24, 28
sC, sIC, sTH, sSTEP, sKVOFF, sFILL, sRD, sP0, sT0, sT1, sT2, sWOOFF, sXB, sX8, sW8, sW4 = range(32, 48)
def srd(b): return f"s[{b}:{b+3}]"
vL, vWB, vWC, vW9, vKB, vVB, vKR, vVR, vD8, vD10, vDW, vDO, vXO, vT0, vT1, vT2 = range(255, 239, -1)

nstamp = [0]
def stamp():
    if P['stamps']:
        i = nstamp[0]; nstamp[0] += 1
        e(f"s_memrealtime s[{64+2*i}:{65+2*i}]")

class VM:
    def __init__(s): s.q = [[], []]
    def issue(s, tag, n0, n1=None):
        if n1 is None: n1 = n0
        s.q[0] += [tag] * n0; s.q[1] += [tag] * n1
    def allowed(s, tags, ty):
        q = s.q[ty]; last = -1
        for i, t in enumerate(q):
            if t in tags: last = i
        return min(63, len(q) - 1 - last)
    def wait(s, tags, ty=None):
        if ty is None: return min(s.allowed(tags, 0), s.allowed(tags, 1))
        return s.allowed(tags, ty)
vm = VM()

def dma_w(tau):
    slot = (tau % 4) * SLOT
    G = []
    for k in range(8):
        so = (64 * tau + (k & 3) + 8 * (k >> 2)) * 8192
        G.append([f"s_add_u32 m0, s{sW8}, {slot + k * PIECE}", f"s_mov_b32 s{sT0}, {so}",
                  f"buffer_load_dwordx4 v{vDW}, {srd(sWQ)}, s{sT0} offen lds"])
    return G
def dma_kv8(t):
    slot = ((7 + t) % 4) * SLOT
    G = []
    for half, s_ in ((0, sK), (1, sV)):
        for k in range(4):
            G.append([f"s_add_u32 m0, s{sW4}, {slot + half * HALF + 32 * k}", f"s_mov_b32 s{sT0}, {t * 16384}",
                      f"buffer_load_dwordx4 v{vD8}, {srd(s_)}, s{sT0} offen offset:{1024 * k}{NT_} lds"])
    return G
def dma_wo8(i):
    slot = ((39 + i) % 4) * SLOT
    G = []
    for k in range(8):
        G.append([f"s_add_u32 m0, s{sW8}, {slot + k * PIECE}", f"s_add_u32 s{sT0}, s{sT2}, {(32 * i + k) * 896}",
                  f"buffer_load_dwordx4 v{vDO}, {srd(sWO)}, s{sT0} offen lds"])
    return G

def emit_kv_dyn(ty):
    n = 1 if ty == 0 else 5
    e(f"s_add_u32 s{sT1}, s{sFILL}, s{sP0}")
    if n == 5: e(f"s_add_u32 s{sT0}, s{sKVOFF}, 4096")
    for half, s_ in ((0, sK), (1, sV)):
        for k in range(n):
            if k < 4:
                e(f"s_add_u32 m0, s{sT1}, {half * HALF + 32 * k}"); e("s_nop 0")
                e(f"buffer_load_dwordx4 v{vD10}, {srd(s_)}, s{sKVOFF} offen offset:{1024 * k}{NT_} lds")
            else:
                e(f"s_add_u32 m0, s{sT1}, {half * HALF + 4 * PIECE}"); e("s_nop 0")
                e(f"buffer_load_dwordx4 v{vD10}, {srd(s_)}, s{sT0} offen{NT_} lds")
    e(f"s_add_u32 s{sKVOFF}, s{sKVOFF}, 16384")
def emit_wo_dyn(ty):
    n = 1 if ty == 0 else 5
    e(f"s_add_u32 s{sT1}, s{sFILL}, s{sP0}")
    for half in (0, 1):
        for k in range(n):
            e(f"s_add_u32 m0, s{sT1}, {half * HALF + k * PIECE}")
            e(f"s_add_u32 s{sT0}, s{sWOOFF}, {(16 * half + k) * 896}")
            e(f"buffer_load_dwordx4 v{vDO}, {srd(sWO)}, s{sT0} offen lds")
    e(f"s_add_u32 s{sWOOFF}, s{sWOOFF}, {32 * 896}")
def adv_slot(s):
    e(f"s_add_u32 s{s}, s{s}, {SLOT}"); e(f"s_cmp_ge_u32 s{s}, {4 * SLOT}"); e(f"s_cselect_b32 s{s}, 0, s{s}")

def stream_phase(frags, boundary, FB=192, NB=16, LA=12, GAP=4, first_boundary_done=False):
    n = len(frags)
    r = 0; lds_after = {}
    nds = 0
    pend = []
    cur_tile = frags[0]['tile'] if first_boundary_done else None
    last_read_m = -10**9
    rq = []
    def try_reads(m, budget):
        nonlocal r, nds, cur_tile, last_read_m, rq
        while budget > 0:
            if not rq:
                if r >= n or r > m + LA or r - NB >= m: return
                f = frags[r]
                if f['tile'] != cur_tile:
                    if r > 0 and m < min(last_read_m + GAP, r): return
                    for g in pend:
                        for y in g: e(y)
                    pend.clear()
                    pre, post = boundary(f['tile'])
                    for x in pre: e(x)
                    pend.extend(post)
                    cur_tile = f['tile']
                rq = list(f['reads'](FB + 4 * (r % NB)))
            e(rq.pop(0)); nds += 1; budget -= 1
            if not rq:
                lds_after[r] = nds; last_read_m = m; r += 1
    try_reads(0, 2 * LA)
    for m in range(n):
        while r <= m: try_reads(m, 2)
        cnt = nds - lds_after[m]
        e(f"s_waitcnt lgkmcnt({min(cnt, 15)})")
        for x in frags[m]['mf'](FB + 4 * (m % NB)):
            e(x)
            if pend and (r - m) >= 6:
                for y in pend.pop(0): e(y)
            else:
                try_reads(m, 2)
    for g in pend:
        for y in g: e(y)

e("; Kernarg: x, k_cache, v_cache, wq, wo, out, debug, ws (8-byte pointers)")
e(f"; @launch kernel={KN} grid=(256,1,1) block=(256,1,1) lds={LDS}")
e(f"; @launch kernel={K2N} grid=(252,1,1) block=(256,1,1) lds=0")
e('.amdgcn_target "amdgcn-amd-amdhsa--gfx950"')
e(".text"); e(f".globl {KN}"); e(".p2align 8"); e(f".type {KN},@function"); e(f"{KN}:")
e("s_cmp_ge_u32 s2, 256"); e("s_cbranch_scc1 L_done")
stamp()
e("s_load_dwordx16 s[48:63], s[0:1], 0")
e(f"v_lshrrev_b32 v{vT0}, 6, v0")
e(f"v_and_b32 v{vL}, 63, v0")
e(f"v_readfirstlane_b32 s3, v{vT0}")
e("s_and_b32 s80, s2, 7"); e("s_lshr_b32 s81, s2, 3")
e("s_and_b32 s82, s81, 1"); e("s_lshl_b32 s80, s80, 1"); e("s_add_u32 s80, s80, s82")
e("s_lshr_b32 s82, s81, 1"); e("s_and_b32 s82, s82, 1")
e("s_lshr_b32 s81, s81, 2")
e("s_lshl_b32 s83, s81, 4"); e("s_add_u32 s83, s83, s80")
e("s_lshl_b32 s84, s83, 1"); e("s_add_u32 s84, s84, s82")
e("s_lshl_b32 s85, s84, 19")
e(f"v_lshrrev_b32 v{vT1}, 2, v{vL}"); e(f"v_mul_u32_u24 v{vWB}, {PIECE}, v{vT1}")
e(f"v_and_b32 v{vT1}, 3, v{vL}"); e(f"v_lshl_add_u32 v{vWB}, v{vT1}, 3, v{vWB}")
e(f"v_lshrrev_b32 v{vT1}, 5, v{vL}"); e(f"v_lshlrev_b32 v{vT1}, 2, v{vT1}")
e(f"v_lshl_add_u32 v{vT1}, v{vT0}, 4, v{vT1}"); e(f"v_lshlrev_b32 v{vDW}, 13, v{vT1}")
e(f"v_and_b32 v{vT1}, 31, v{vL}"); e(f"v_lshl_add_u32 v{vDW}, v{vT1}, 4, v{vDW}")
e(f"v_and_b32 v{vT1}, 15, v{vL}"); e(f"v_lshl_add_u32 v{vT1}, v{vT0}, 4, v{vT1}")
e(f"v_mul_u32_u24 v{vXO}, 896, v{vT1}")
e(f"v_lshrrev_b32 v{vT1}, 4, v{vL}"); e(f"v_lshl_add_u32 v{vXO}, v{vT1}, 4, v{vXO}")
e(f"s_mul_i32 s{sW8}, s3, {8 * PIECE}"); e(f"s_mul_i32 s{sW4}, s3, {4 * PIECE}")
e(f"s_mov_b32 s{sXB}, {64 * 896}")
e(f"s_mul_i32 s{sX8}, s3, {16 * 896}"); e(f"s_sub_u32 s{sX8}, {128 * 896}, s{sX8}")
e("s_waitcnt lgkmcnt(0)")
e(f"s_mul_i32 s86, s81, {144 * 896}")
e(f"s_add_u32 s{sX}, s48, s86"); e(f"s_addc_u32 s{sX+1}, s49, 0"); e(f"s_mov_b32 s{sX+2}, {144 * 896}"); e(f"s_mov_b32 s{sX+3}, 0x20000")
e("s_lshl_b32 s86, s80, 9")
e(f"s_add_u32 s{sWQ}, s54, s86"); e(f"s_addc_u32 s{sWQ+1}, s55, 0"); e(f"s_sub_u32 s{sWQ+2}, {448 * 8192}, s86"); e(f"s_mov_b32 s{sWQ+3}, 0x20000")
def xload(T, s):
    so = ["0", f"s{sXB}", f"s{sX8}"][T]
    e(f"buffer_load_dwordx4 {ar(56 * T + 4 * s)}, v{vXO}, {srd(sX)}, {so} offen offset:{64 * s}")
    vm.issue(f"x{s}", 1)
for tau in range(4):
    for s in (2 * tau, 2 * tau + 1):
        for T in range(3): xload(T, s)
    for g in dma_w(tau):
        for y in g: e(y)
    vm.issue(f"t{tau}", 8)
for s in range(8, 14):
    for T in range(3): xload(T, s)
e(f"s_add_u32 s{sK}, s50, s85"); e(f"s_addc_u32 s{sK+1}, s51, 0"); e(f"s_mov_b32 s{sK+2}, {1 << 19}"); e(f"s_mov_b32 s{sK+3}, 0x20000")
e(f"s_add_u32 s{sV}, s52, s85"); e(f"s_addc_u32 s{sV+1}, s53, 0"); e(f"s_mov_b32 s{sV+2}, {1 << 19}"); e(f"s_mov_b32 s{sV+3}, 0x20000")
e(f"s_mul_i32 s86, s80, {256 * 896}")
e(f"s_add_u32 s{sWO}, s56, s86"); e(f"s_addc_u32 s{sWO+1}, s57, 0"); e(f"s_mov_b32 s{sWO+2}, {256 * 896}"); e(f"s_mov_b32 s{sWO+3}, 0x20000")
e(f"s_mul_i32 s86, s84, {YSZ}")
e(f"s_add_u32 s{sY}, s62, s86"); e(f"s_addc_u32 s{sY+1}, s63, 0"); e(f"s_mov_b32 s{sY+2}, {YSZ}"); e(f"s_mov_b32 s{sY+3}, 0x20000")
e("s_lshl_b32 s86, s84, 11"); e(f"s_add_u32 s86, s86, {STOFF}")
e(f"s_add_u32 s{sST}, s62, s86"); e(f"s_addc_u32 s{sST+1}, s63, 0"); e(f"s_mov_b32 s{sST+2}, 1152"); e(f"s_mov_b32 s{sST+3}, 0x20000")
e(f"s_mov_b32 s{sC}, {f2h(CS)}"); e(f"s_mov_b32 s{sIC}, {f2h(1.0 / CS)}"); e(f"s_mov_b32 s{sTH}, {f2h(THR / CS)}")
e("s_mul_i32 s86, s3, 5"); e("s_sub_u32 s86, s86, 4"); e("s_cmp_eq_u32 s3, 0"); e("s_cselect_b32 s86, 0, s86")
e(f"s_mul_i32 s{sP0}, s86, {PIECE}")
e(f"s_mul_i32 s{sWOOFF}, s86, 896")
e(f"s_mul_i32 s{sT2}, s3, {8 * 896}")
e("s_lshl_b32 s86, s86, 10")
e(f"v_lshlrev_b32 v{vT1}, 4, v{vL}")
e(f"v_add_u32 v{vD10}, s86, v{vT1}")
e(f"v_lshl_add_u32 v{vD8}, v{vT0}, 12, v{vT1}")
e(f"v_mov_b32 v{vT2}, 0x40000000")
e(f"v_cmp_gt_u32 vcc, 56, v{vL}")
e("s_nop 1")
e(f"v_cndmask_b32 v{vDO}, v{vT2}, v{vT1}, vcc")
e(f"v_and_b32 v{vT1}, 7, v{vL}"); e(f"v_mul_u32_u24 v{vKB}, {PIECE}, v{vT1}")
e(f"v_bfe_u32 v{vT1}, v{vL}, 3, 1"); e(f"v_lshl_add_u32 v{vKB}, v{vT1}, 9, v{vKB}")
e(f"v_lshrrev_b32 v{vT1}, 4, v{vL}"); e(f"v_lshl_add_u32 v{vKB}, v{vT1}, 4, v{vKB}")
e(f"v_bfe_u32 v{vT1}, v{vL}, 2, 3"); e(f"v_mul_u32_u24 v{vVB}, {PIECE}, v{vT1}")
e(f"v_lshrrev_b32 v{vT1}, 5, v{vL}"); e(f"v_lshl_add_u32 v{vVB}, v{vT1}, 9, v{vVB}")
e(f"v_and_b32 v{vT1}, 3, v{vL}"); e(f"v_lshl_add_u32 v{vVB}, v{vT1}, 3, v{vVB}")
e("s_lshl_b32 s87, s3, 7")
e("s_mul_i32 s88, s3, 224")

frags = []
for s in range(14):
    tau, en = s >> 1, s & 1
    for T in range(20):
        own = T < 16
        col = T if own else T - 16
        base = vWC if own else vW9
        def reads(fb, base=base, en=en, col=col):
            return [f"ds_read_b64_tr_b16 {ar(fb + 2 * v, 2)}, v{base} offset:{en * HALF + v * 512 + 32 * col}" for v in range(2)]
        def mf(fb, own=own, col=col, s=s):
            tl = [(0, 4 * col), (1, 64 + 4 * col)] if own else [(2, 128 + 4 * col)]
            return [f"{MF} {vr(acc)}, {ar(fb)}, {ar(56 * X + 4 * s)}, {'0' if s == 0 else vr(acc)}" for X, acc in tl]
        frags.append(dict(tile=tau, reads=reads, mf=mf))
def q_boundary(tau):
    pre = [f"s_waitcnt vmcnt({vm.wait({f't{tau}', f'x{2*tau}', f'x{2*tau+1}'})}) lgkmcnt(0)", "s_barrier",
           f"v_add_u32 v{vWC}, {(tau % 4) * SLOT}, v{vWB}", f"v_add_u32 v{vW9}, s87, v{vWC}"]
    post = []
    if tau >= 1:
        n = tau + 3
        post = dma_w(n) if n < 7 else dma_kv8(n - 7)
        vm.issue(f"t{n}", 8)
    return pre, post
stream_phase(frags, q_boundary)
stamp()
e("s_nop 7")
def qconv(src, dst):
    e(f"v_cvt_pk_bf16_f32 v{dst}, v{src}, v{src+1}"); e(f"v_cvt_pk_bf16_f32 v{dst+1}, v{src+2}, v{src+3}")
    e(f"v_cvt_pk_bf16_f32 v{dst+2}, v{src+4}, v{src+5}"); e(f"v_cvt_pk_bf16_f32 v{dst+3}, v{src+6}, v{src+7}")
def qswap(d):
    e(f"v_permlane32_swap_b32 v{d}, v{d+2}"); e(f"v_permlane32_swap_b32 v{d+1}, v{d+3}")
def qswap2(d):
    e(f"v_permlane16_swap_b32 v{d}, v{d+2}"); e(f"v_permlane16_swap_b32 v{d+1}, v{d+3}")
qconv(128, 144); qconv(136, 148)
e(f"v_lshlrev_b32 v{vT1}, 4, v{vL}"); e("s_lshl_b32 s86, s3, 11")
qswap(144); qswap(148); qswap2(144); qswap2(148)
e(f"v_add_u32 v{vT2}, {SPARE}, v{vT1}")
e(f"v_add_u32 v{vT1}, s86, v{vT2}")
e(f"ds_write_b128 v{vT1}, {vr(144)}"); e(f"ds_write_b128 v{vT1}, {vr(148)} offset:1024")
for t in range(16): qconv(8 * t, 152 + 4 * t)
for t in range(16): qswap(152 + 4 * t)
for t in range(16): qswap2(152 + 4 * t)
for i in range(64): e(f"v_accvgpr_write_b32 a{i}, v{152 + i}")
e(f"v_mov_b32 v{vT1}, 0x3f803f80")
for i in range(4): e(f"v_accvgpr_write_b32 a{236 + i}, v{vT1}")
e(f"v_add_u32 v{vKR}, {3 * SLOT}, v{vKB}"); e(f"v_add_u32 v{vVR}, {3 * SLOT}, v{vVB}")
e(f"s_mov_b32 s{sKVOFF}, {3 * 16384}"); e(f"s_mov_b32 s{sFILL}, {2 * SLOT}"); e(f"s_mov_b32 s{sRD}, 0"); e(f"s_mov_b32 s{sSTEP}, 0")
e(f"s_waitcnt vmcnt({vm.wait({'t7'})}) lgkmcnt(0)"); e("s_barrier")
e("s_cmp_lg_u32 s3, 0"); e("s_cbranch_scc1 L_type1")

QF, KF, VF, LF, ONES = 0, 96, 160, 224, 236
SR, PR, NM, TMP = 192, 216, 228, 234
rare_blocks = []
def kreads():
    return [f"ds_read_b128 {ar(KF + 4 * (2 * t + u))}, v{vKR} offset:{u * 8 * PIECE + 64 * t}" for t in range(8) for u in range(2)]
def vreads():
    return [f"ds_read_b64_tr_b16 {ar(VF + 4 * dt + 2 * u, 2)}, v{vVR} offset:{HALF + u * 8 * PIECE + 32 * dt}" for dt in range(16) for u in range(2)]
def xmax(t0, t1):
    return [f"v_mov_b32 v{t1}, v{t0}", "s_nop 1", f"v_permlane32_swap_b32 v{t0}, v{t1}", "s_nop 1", f"v_max_f32 v{t0}, v{t0}, v{t1}",
            f"v_mov_b32 v{t1}, v{t0}", "s_nop 1", f"v_permlane16_swap_b32 v{t0}, v{t1}", "s_nop 1", f"v_max_f32 v{t0}, v{t0}, v{t1}"]
def softmax(T, ty, first):
    s = SR + 8 * T; p = PR + 4 * T; nm = NM + 2 * T; th = nm + 1; t0 = TMP + 2 * (T & 1); t1 = t0 + 1
    F = []
    def f(x, c=4): F.append((x, c))
    f(f"v_max3_f32 v{t0}, v{s}, v{s+1}, v{s+2}"); f(f"v_max3_f32 v{t1}, v{s+4}, v{s+5}, v{s+6}")
    f(f"v_max3_f32 v{t0}, v{t0}, v{s+3}, v{s+7}"); f(f"v_max_f32 v{t0}, v{t0}, v{t1}")
    if first:
        for x in xmax(t0, t1): f(x)
        f(f"v_mul_f32 v{nm}, s{sC}, v{t0}"); f(f"v_add_f32 v{th}, s{sTH}, v{t0}"); f(f"v_sub_f32 v{nm}, 0, v{nm}")
    else:
        lab = f"{ty}_{T}"
        f([f"v_cmp_gt_f32 vcc, v{t0}, v{th}", f"s_cbranch_vccnz L_rare{lab}", f"L_ret{lab}:"], 8)
        R = [f"L_rare{lab}:"] + xmax(t0, t1)
        R += [f"v_mul_f32 v{t0}, s{sC}, v{t0}", f"v_max_f32 v{t0}, v{t0}, -v{nm}",
              f"v_sub_f32 v{t1}, -v{nm}, v{t0}", f"v_exp_f32 v{t1}, v{t1}",
              f"v_sub_f32 v{nm}, 0, v{t0}", f"v_mov_b32 v{th}, s{sTH}", f"v_fma_f32 v{th}, v{t0}, s{sIC}, v{th}"]
        R += [f"v_mul_f32 v{64 * T + i}, v{64 * T + i}, v{t1}" for i in range(64)]
        for i in range(4):
            R += [f"v_accvgpr_read_b32 v{t0}, a{LF + 4 * T + i}", f"v_mul_f32 v{t0}, v{t0}, v{t1}", f"v_accvgpr_write_b32 a{LF + 4 * T + i}, v{t0}"]
        R += [f"s_branch L_ret{lab}"]
        rare_blocks.append(R)
    for i in range(8): f(f"v_fma_f32 v{s+i}, v{s+i}, s{sC}, v{nm}")
    for i in range(8): f(f"v_exp_f32 v{s+i}, v{s+i}", 8)
    for i in range(4): f(f"v_cvt_pk_bf16_f32 v{p+i}, v{s+2*i}, v{s+2*i+1}")
    return F

def step(NTl, ty, first, vmn, issue_fn):
    M = []
    for T in range(NTl):
        for t in range(8):
            for u in range(2):
                d = SR + 8 * T + 4 * u
                M.append(dict(x=f"{MF} {vr(d)}, {ar(KF + 4 * (2 * t + u))}, {ar(QF + 32 * T + 4 * t)}, {'0' if t == 0 else vr(d)}"))
    nA = len(M)
    for T in range(NTl):
        for dt in range(16):
            d = 64 * T + 4 * dt
            M.append(dict(x=f"{MF} {vr(d)}, {ar(VF + 4 * dt)}, {vr(PR + 4 * T)}, {'0' if first else vr(d)}", needs=f"sm{T}"))
        d = LF + 4 * T
        M.append(dict(x=f"{MF} {ar(d)}, {ar(ONES)}, {vr(PR + 4 * T)}, {'0' if first else ar(d)}"))
    F = [(x, 4, 'vr', -1) for x in vreads()]
    for T in range(NTl - 1):
        F += [(x, c, f"sm{T}", 16 * (T + 1) - 1) for x, c in softmax(T, ty, first)]
    FB_ = [(x, 4, 'kr', -1) for x in kreads()]
    FB_ += [(x, c, f"sm{NTl-1}", nA - 1) for x, c in softmax(NTl - 1, ty, first)]
    pos = {}
    cnt = [0]
    lastpos = {}
    def em(x):
        for y in (x if isinstance(x, list) else [x]):
            e(y)
            if not y.endswith(':'): cnt[0] += 1
    def fill(budget):
        while F and budget > 0:
            x, c, tag, aft = F[0]
            if aft >= 0 and (aft not in pos or cnt[0] - pos[aft] < 8): return
            em(x); budget -= c; F.pop(0); lastpos[tag] = cnt[0]
    def flush(tag):
        did = False
        while any(t == tag for _, _, t, _ in F):
            x, c, t, aft = F[0]
            if aft >= 0 and cnt[0] - pos[aft] < 8:
                em(f"s_nop {8 - (cnt[0] - pos[aft]) - 1}"); cnt[0] += 8
            em(x); F.pop(0); did = True; lastpos[t] = cnt[0]
        return did
    e("s_waitcnt lgkmcnt(0)"); cnt[0] += 1
    lastcvt = {}
    for i, m in enumerate(M):
        if i == nA:
            flush('vr')
            em(f"s_waitcnt vmcnt({vmn}) lgkmcnt(0)"); em("s_barrier")
            em(f"v_add_u32 v{vKR}, s{sRD}, v{vKB}"); em(f"v_add_u32 v{vVR}, s{sRD}, v{vVB}")
            issue_fn()
            adv_slot(sFILL); adv_slot(sRD)
            kr = [f for f in FB_ if f[2] == 'kr']; rest = [f for f in FB_ if f[2] != 'kr']
            F[:] = (kr + F + rest) if ty == 0 else (F + rest + kr)
            cnt[0] += 8
        if 'needs' in m:
            flush(m['needs'])
            d = cnt[0] - lastpos[m['needs']]
            if d < 2: em(f"s_nop {1 - d}"); cnt[0] += 1
        em(m['x']); pos[i] = cnt[0]
        fill(8)
    assert not F, F

def main_loop(ty):
    NTl = 3 if ty == 0 else 2
    n = 2 if ty == 0 else 10
    emit_kv_dyn(ty); adv_slot(sFILL)
    if ty == 0:
        for t in range(8): e(f"ds_read_b128 {ar(QF + 64 + 4 * t)}, v{vT2} offset:{1024 * t}")
    for x in kreads(): e(x)
    step(NTl, ty, True, 8 + n, lambda: emit_kv_dyn(ty))
    e(f"s_mov_b32 s{sSTEP}, 1")
    e(f"L_loop{ty}:")
    def iss():
        e(f"s_cmp_lt_u32 s{sSTEP}, 28"); e(f"s_cbranch_scc0 L_wo{ty}")
        emit_kv_dyn(ty)
        e(f"L_wob{ty}:")
    step(NTl, ty, False, 2 * n, iss)
    e(f"s_add_u32 s{sSTEP}, s{sSTEP}, 1"); e(f"s_cmp_lt_u32 s{sSTEP}, 32"); e(f"s_cbranch_scc1 L_loop{ty}")

def opack(src, dst):
    for t in range(8): qconv(src + 8 * t, dst + 4 * t)
def stats_store(T, rowoff_s):
    d = SR + 2 * T
    e(f"v_sub_f32 v{d}, 0, v{NM + 2 * T}"); e(f"v_accvgpr_read_b32 v{d+1}, a{LF + 4 * T}")
    e(f"buffer_store_dwordx2 {vr(d, 2)}, v{vT0}, {srd(sST)}, {rowoff_s} offen")

def stats_addr():
    e(f"v_lshlrev_b32 v{vT0}, 3, v{vL}"); e(f"v_mov_b32 v{vT1}, 0x40000000")
    e(f"v_cmp_gt_u32 vcc, 16, v{vL}"); e("s_lshl_b32 s86, s3, 7"); e("s_add_u32 s89, s86, 512")
    e(f"v_cndmask_b32 v{vT0}, v{vT1}, v{vT0}, vcc")

main_loop(0)
e("s_nop 7")
opack(128, 128)
for t in range(8): e(f"ds_write_b128 v{vT2}, {vr(128 + 4 * t)} offset:{1024 * t}")
stats_addr()
e("s_mov_b32 s90, 1024")
stats_store(2, "s90")
e("s_branch L_tail")
e(f"L_wo0:"); emit_wo_dyn(0); e("s_branch L_wob0")
e("L_type1:")
main_loop(1)
e("s_nop 7")
stats_addr()
e("L_tail:")
stamp()
for t in range(4): vm.issue(f"o{t}", 2, 10)
vm.issue("st", 1, 0)
stats_store(0, "s86"); stats_store(1, "s89")
vm.issue("st", 2)
opack(0, 0); opack(64, 32)
def yacc(X, N):
    if X == 0: return ('v', 64 + 4 * N)
    if X == 1: return ('v', 176 + 4 * N) if N < 16 else ('a', 32 + 4 * (N - 16))
    return ('a', 80 + 4 * N)
def rs(k, n=4): return vr(k[1], n) if k[0] == 'v' else ar(k[1], n)
frags = []
for t in range(8):
    for N in range(35):
        own = N < 28
        col = N if own else N - 28
        base = vWC if own else vW9
        def reads(fb, base=base, col=col):
            return [f"ds_read_b64_tr_b16 {ar(fb + 2 * v, 2)}, v{base} offset:{v * HALF + 32 * col}" for v in range(2)]
        def mf(fb, own=own, col=col, t=t):
            tl = [(0, vr(4 * t)), (1, vr(32 + 4 * t))] if own else [(2, ar(4 * t))]
            return [f"{MF} {rs(yacc(X, col))}, {ar(fb)}, {b}, {'0' if t == 0 else rs(yacc(X, col))}" for X, b in tl]
        frags.append(dict(tile=t, reads=reads, mf=mf))
def o_boundary(i):
    pre = [f"s_waitcnt vmcnt({vm.wait({f'o{i}'})}) lgkmcnt(0)", "s_barrier",
           f"v_add_u32 v{vWC}, {((39 + i) % 4) * SLOT}, v{vWB}", f"v_add_u32 v{vW9}, s88, v{vWC}"]
    post = []
    if i == 0:
        pre += [f"ds_read_b128 {ar(4 * t)}, v{vT2} offset:{1024 * t}" for t in range(8)]
    if i >= 1 and i + 3 < 8:
        post = dma_wo8(i + 3); vm.issue(f"o{i+3}", 8)
    return pre, post
stream_phase(frags, o_boundary)
stamp()
e("s_nop 7")
e(f"v_lshlrev_b32 v{vT0}, 4, v{vL}")
e(f"s_mul_i32 s86, s3, {14 * 1024}"); e(f"s_add_u32 s89, s86, {4 * 14 * 1024}")
def ystore_pair(b, soff, Np):
    qconv(b, b)
    so = f"s{sT0}"
    e(f"s_add_u32 s{sT0}, {soff}, {1024 * (Np & ~3)}") if (Np & 3) == 0 else None
    e(f"buffer_store_dwordx4 {vr(b)}, v{vT0}, {srd(sY)}, {so} offen offset:{1024 * (Np & 3)}")
for Np in range(14): ystore_pair(64 + 8 * Np, "s86", Np)
for i in range(48): e(f"v_accvgpr_read_b32 v{i}, a{32 + i}")
for Np in range(14): ystore_pair(176 + 8 * Np if Np < 8 else 8 * (Np - 8), "s89", Np)
for i in range(28): e(f"v_accvgpr_read_b32 v{64 + i}, a{80 + i}")
e("s_mul_i32 s86, s3, 7")
for k in range(7):
    b = 64 + 4 * k
    e(f"v_cvt_pk_bf16_f32 v{b}, v{b}, v{b+1}"); e(f"v_cvt_pk_bf16_f32 v{b+1}, v{b+2}, v{b+3}")
    e(f"s_add_u32 s89, s86, {k}"); e("s_lshr_b32 s90, s89, 1"); e("s_lshl_b32 s90, s90, 10")
    e("s_and_b32 s89, s89, 1"); e("s_lshl_b32 s89, s89, 3"); e("s_add_u32 s89, s89, s90"); e(f"s_add_u32 s89, s89, {8 * 14 * 1024}")
    e(f"buffer_store_dwordx2 {vr(b, 2)}, v{vT0}, {srd(sY)}, s89 offen")
if P['stamps']:
    e("s_waitcnt vmcnt(0)")
    stamp()
    e("s_waitcnt lgkmcnt(0)")
    e("s_cmp_lg_u32 s3, 0"); e("s_cbranch_scc1 L_done")
    e("s_lshl_b32 s86, s2, 6"); e(f"s_add_u32 s86, s86, {WS - 256 * 64}")
    e("s_add_u32 s92, s62, s86"); e("s_addc_u32 s93, s63, 0"); e("s_mov_b32 s94, 64"); e("s_mov_b32 s95, 0x20000")
    e(f"v_lshlrev_b32 v{vT0}, 6, v{vL}")
    for i in range(nstamp[0]):
        e(f"v_mov_b32 v0, s{64 + 2 * i}"); e(f"v_mov_b32 v1, s{65 + 2 * i}")
        e(f"buffer_store_dwordx2 v[0:1], v{vT0}, s[92:95], 0 offen offset:{8 * i}"); e("s_nop 1")
e("L_done:"); e("s_endpgm")
e(f"L_wo1:"); emit_wo_dyn(1); e("s_branch L_wob1")
for R in rare_blocks:
    for x in R: e(x)

e(f".globl {K2N}"); e(".p2align 8"); e(f".type {K2N},@function"); e(f"{K2N}:")
e("s_cmp_ge_u32 s2, 252"); e("s_cbranch_scc1 L2_done")
e("s_load_dwordx2 s[4:5], s[0:1], 40"); e("s_load_dwordx2 s[6:7], s[0:1], 56")
e("v_lshrrev_b32 v1, 6, v0"); e("v_and_b32 v2, 63, v0")
e("v_readfirstlane_b32 s3, v1")
e("s_lshl_b32 s8, s2, 2"); e("s_add_u32 s8, s8, s3")
e(f"s_mul_hi_u32 s9, s8, {(2**32 + 125) // 126}")
e("s_mul_i32 s10, s9, 126"); e("s_sub_u32 s10, s8, s10")
e(f"s_mul_hi_u32 s11, s10, {(2**32 + 13) // 14}")
e("s_mul_i32 s12, s11, 14"); e("s_sub_u32 s12, s10, s12")
e("s_waitcnt lgkmcnt(0)")
e("s_lshl_b32 s13, s9, 16"); e(f"s_add_u32 s13, s13, {STOFF}")
e("s_add_u32 s16, s6, s13"); e("s_addc_u32 s17, s7, 0"); e("s_mov_b32 s18, 65536"); e("s_mov_b32 s19, 0x20000")
e(f"s_mul_i32 s13, s9, {32 * YSZ}")
e("s_add_u32 s20, s6, s13"); e("s_addc_u32 s21, s7, 0"); e(f"s_mov_b32 s22, {32 * YSZ}"); e("s_mov_b32 s23, 0x20000")
e("s_mov_b32 s24, s4"); e("s_mov_b32 s25, s5"); e(f"s_mov_b32 s26, {8 * 144 * 448 * 2}"); e("s_mov_b32 s27, 0x20000")
e("v_and_b32 v3, 15, v2")
e("s_lshl_b32 s13, s11, 4"); e("v_add_u32 v4, s13, v3")
e("v_lshlrev_b32 v5, 3, v4")
e("s_lshl_b32 s14, s10, 10"); e("v_lshlrev_b32 v6, 4, v2"); e("v_add_u32 v6, s14, v6")
for i in range(32):
    e(f"s_mov_b32 s28, {i * 2048}")
    e(f"buffer_load_dwordx2 v[{16 + 2 * i}:{17 + 2 * i}], v5, s[16:19], s28 offen")
for i in range(32):
    e(f"s_mov_b32 s28, {i * YSZ}")
    e(f"buffer_load_dwordx4 {vr(80 + 4 * i)}, v6, s[20:23], s28 offen")
e("s_mul_i32 s13, s9, 144"); e("v_add_u32 v4, s13, v4"); e("v_mul_u32_u24 v7, 896, v4")
e("v_lshrrev_b32 v8, 4, v2"); e("v_lshl_add_u32 v7, v8, 3, v7"); e("s_lshl_b32 s13, s12, 6"); e("v_add_u32 v7, s13, v7")
e("s_waitcnt vmcnt(32)")
for h in range(16):
    m0, l0, m1, l1 = 16 + 4 * h, 17 + 4 * h, 18 + 4 * h, 19 + 4 * h
    e(f"v_max_f32 v8, v{m0}, v{m1}")
    e(f"v_sub_f32 v{m0}, v{m0}, v8"); e(f"v_sub_f32 v{m1}, v{m1}, v8")
    e(f"v_exp_f32 v{m0}, v{m0}"); e(f"v_exp_f32 v{m1}, v{m1}")
    e(f"v_mul_f32 v{l0}, v{l0}, v{m0}"); e(f"v_fma_f32 v{l0}, v{l1}, v{m1}, v{l0}")
    e(f"v_rcp_f32 v{l0}, v{l0}"); e("s_nop 0")
    e(f"v_mul_f32 v{m0}, v{m0}, v{l0}"); e(f"v_mul_f32 v{m1}, v{m1}, v{l0}")
for i in range(8): e(f"v_mov_b32 v{208 + i}, 0")
for i in range(32):
    e(f"s_waitcnt vmcnt({31 - i})")
    w = 16 + 2 * i
    for j in range(4):
        y = 80 + 4 * i + j
        e(f"v_lshlrev_b32 v8, 16, v{y}"); e(f"v_and_b32 v9, 0xffff0000, v{y}")
        e(f"v_fmac_f32 v{208 + 2 * j}, v8, v{w}"); e(f"v_fmac_f32 v{209 + 2 * j}, v9, v{w}")
for j in range(4): e(f"v_cvt_pk_bf16_f32 v{216 + j}, v{208 + 2 * j}, v{209 + 2 * j}")
e("buffer_store_dwordx2 v[216:217], v7, s[24:27], 0 offen")
e("buffer_store_dwordx2 v[218:219], v7, s[24:27], 0 offen offset:32")
e("L2_done:"); e("s_endpgm")

e('.section .rodata,"a"')
for name, nv, acc in ((KN, 512, 256), (K2N, 224, 224)):
    e(".p2align 6"); e(f".amdhsa_kernel {name}")
    e(f"  .amdhsa_next_free_vgpr {nv}"); e("  .amdhsa_next_free_sgpr 102"); e(f"  .amdhsa_accum_offset {acc}")
    e("  .amdhsa_group_segment_fixed_size 0"); e("  .amdhsa_kernarg_size 64"); e("  .amdhsa_user_sgpr_count 2")
    e("  .amdhsa_user_sgpr_kernarg_segment_ptr 1"); e("  .amdhsa_system_sgpr_workgroup_id_x 1"); e(".end_amdhsa_kernel")

text = "\n".join(A) + "\n"
open(P['out'], "w").write(text)
hz = check(text)
for x in hz[:40]: print(x)
print(len(hz), "hazards;", len(A), "lines")
```

```python
import sys, struct, math
sys.path.insert(0, 'gen')
from hazard import check, I

P = dict(out='standalone__mha_block_cached__near_ridge.s', stamps=0, nt=1, yst=1, k2nt=1, cpf=1, sp=4, sg=0, rb=2, lo=7, tp=0, early=1, slp=4)
for a in sys.argv[1:]:
    k, v = a.split('='); P[k] = v if k == 'out' else int(v)

def f2h(x): return '0x%08x' % struct.unpack('<I', struct.pack('<f', x))[0]
KN = "standalone__mha_block_cached__near_ridge_kernel"
K2N = "mha_reduce_kernel"
SLOT, PIECE, HALF = 33792, 1056, 16896
SPARE = 4 * SLOT
XSP = SPARE + 8192
LDS = XSP + 16 * PIECE
YSZ = 128 * 1024
XOFF = 128 * YSZ
OAREA = 3 * SLOT
WS = 536870912
CS = 0.0625 * math.log2(math.e)
THR = 8.0

A = []
def e(s): A.append(s)
def vr(b, n=4): return f"v[{b}:{b+n-1}]"
def ar(b, n=4): return f"a[{b}:{b+n-1}]"
MF = "v_mfma_f32_16x16x32_bf16"
NT_ = " nt" if P['nt'] else ""
YST = ["", " sc1", " sc0 sc1", " nt"][P['yst']]

sK, sV, sWQ, sWO, sX, sY, sXO = 4, 8, 12, 16, 20, 24, 28
sXI, sDB = 12, 20
sC, sIC, sTH, sSTEP, sKVOFF, sFILL, sRD, sP0, sT0, sT1, sWO8, sWOOFF, sXA, sX8, sW8, sW4 = range(32, 48)
sH, sB, sHALF, sPI, sKVB, sA0, sA1, sA2, sA3, sA4 = range(80, 90)
def srd(b): return f"s[{b}:{b+3}]"
def mksrd(d, lo, hi, off, size):
    e(f"s_add_u32 s{d}, s{lo}, {off}"); e(f"s_addc_u32 s{d+1}, s{hi}, 0"); e(f"s_mov_b32 s{d+2}, {size}"); e(f"s_mov_b32 s{d+3}, 0x20000")
vL, vWB, vWC, vW9, vKB, vVB, vKR, vVR, vD8, vD10, vDW, vDO, vXD, vT0, vT1, vSP = range(255, 239, -1)
vCP = 239
vTP = 238
vF0 = 239
sFL = 96
sEV = 97

nstamp = [0]
def stampi(grp=0):
    if P['stamps'] and (grp == P['sg'] or nstamp[0] == 0) and nstamp[0] < 8:
        i = nstamp[0]; nstamp[0] += 1
        return [f"{'s_memrealtime' if P['stamps'] == 1 else 's_memtime'} s[{64+2*i}:{65+2*i}]"]
    return []
def stamp(grp=0):
    for x in stampi(grp): e(x)

class VM:
    def __init__(s): s.q = [[], []]
    def issue(s, tag, n0, n1=None):
        if n1 is None: n1 = n0
        s.q[0] += [tag] * n0; s.q[1] += [tag] * n1
    def allowed(s, tags, ty):
        q = s.q[ty]; last = -1
        for i, t in enumerate(q):
            if t in tags: last = i
        return min(63, len(q) - 1 - last)
    def wait(s, tags, ty=None):
        if ty is None: return min(s.allowed(tags, 0), s.allowed(tags, 1))
        return s.allowed(tags, ty)
vm = VM()
def eg(g):
    for y in g[0]: e(y)
    if g[1]: vm.issue(g[1], 1)

def dma_w(tau):
    slot = ((tau + 1) % 4) * SLOT
    return [([f"s_add_u32 m0, s{sW8}, {slot + k * PIECE}", f"s_mov_b32 s{sT0}, {(64 * tau + (k & 3) + 8 * (k >> 2)) * 8192}",
              f"buffer_load_dwordx4 v{vDW}, {srd(sWQ)}, s{sT0} offen lds"], f"t{tau}") for k in range(8)]
def dma_kv8(t):
    slot = (t % 4) * SLOT
    return [([f"s_add_u32 m0, s{sW4}, {slot + half * HALF + 32 * k}", f"s_mov_b32 s{sT0}, {t * 16384}",
              f"buffer_load_dwordx4 v{vD8}, {srd(s_)}, s{sT0} offen offset:{1024 * k}{NT_} lds"], f"t{7+t}")
            for half, s_ in ((0, sK), (1, sV)) for k in range(4)]
def dma_wo8(i):
    slot = (i % 4) * SLOT
    return [([f"s_add_u32 m0, s{sW8}, {slot + k * PIECE}", f"s_add_u32 s{sT0}, s{sWO8}, {k * 896 + 128 * i}",
              f"buffer_load_dwordx4 v{vDO}, {srd(sWO)}, s{sT0} offen lds"], f"o{i}") for k in range(8)]

def touch(t):
    return [([f"s_mov_b32 s{sT0}, {t * 16384}", f"buffer_load_dword v{vXD}, v{vTP}, s[92:95], s{sT0} offen"], "tp")]
def emit_kv_dyn(ty):
    n = 1 if ty == 0 else 5
    e(f"s_add_u32 s{sT1}, s{sFILL}, s{sP0}")
    if n == 5: e(f"s_add_u32 s{sT0}, s{sKVOFF}, 4096")
    for half, s_ in ((0, sK), (1, sV)):
        for k in range(n):
            if k < 4:
                e(f"s_add_u32 m0, s{sT1}, {half * HALF + 32 * k}"); e("s_nop 0")
                e(f"buffer_load_dwordx4 v{vD10}, {srd(s_)}, s{sKVOFF} offen offset:{1024 * k}{NT_} lds")
            else:
                e(f"s_add_u32 m0, s{sT1}, {half * HALF + 4 * PIECE}"); e("s_nop 0")
                e(f"buffer_load_dwordx4 v{vD10}, {srd(s_)}, s{sT0} offen{NT_} lds")
    e(f"s_add_u32 s{sKVOFF}, s{sKVOFF}, 16384")
def emit_wo_dyn(ty):
    n = 1 if ty == 0 else 5
    e(f"s_add_u32 s{sT1}, s{sFILL}, s{sP0}")
    for half in (0, 1):
        for k in range(n):
            e(f"s_add_u32 m0, s{sT1}, {half * HALF + k * PIECE}")
            e(f"s_add_u32 s{sT0}, s{sWOOFF}, {(16 * half + k) * 896}")
            e(f"buffer_load_dwordx4 v{vDO}, {srd(sWO)}, s{sT0} offen lds")
    e(f"s_add_u32 s{sWOOFF}, s{sWOOFF}, 128")
def adv_slot(s):
    e(f"s_add_u32 s{s}, s{s}, {SLOT}"); e(f"s_cmp_ge_u32 s{s}, {4 * SLOT}"); e(f"s_cselect_b32 s{s}, 0, s{s}")

def stream_phase(frags, boundary, FB=192, NB=16, LA=12, GAP=4, MINB=6):
    n = len(frags)
    r = 0; lds_after = {}; nds = 0
    pend = []; post = []
    cur_tile = None; last_read_m = -10**9; rq = []
    done_upto = [0]
    nmf = [0]
    def try_reads(m, budget):
        nonlocal r, nds, cur_tile, last_read_m, rq
        did = 0
        while budget > 0:
            if not rq:
                if r >= n or r > m + LA or r - NB >= m: return did
                f = frags[r]
                if f['tile'] != cur_tile:
                    if r > 0 and m < min(last_read_m + GAP, r): return did
                    for g in pend: eg(g)
                    pend.clear()
                    pre, nxt = boundary(f['tile'])
                    done_upto[0] = nds
                    for x in pre:
                        e(x)
                        if x.startswith('ds_'): nds += 1
                    pend.extend(nxt)
                    cur_tile = f['tile']
                rq = list(f['reads'](FB + 4 * (r % NB)))
            e(rq.pop(0)); nds += 1; budget -= 1; did += 1
            if not rq:
                lds_after[r] = nds; last_read_m = m; r += 1
        return did
    try_reads(0, 2 * LA)
    for m in range(n):
        while r <= m: try_reads(m, 2)
        if lds_after[m] > done_upto[0]:
            cnt = min(nds - lds_after[m], 15)
            e(f"s_waitcnt lgkmcnt({cnt})"); done_upto[0] = nds - cnt
        for x in frags[m]['mf'](FB + 4 * (m % NB)):
            dd = I(x, 0).defs
            while any(I(y, 0).uses & dd for _, g in post for y in g[0]):
                assert post[0][0] <= len(A)
                eg(post.pop(0)[1])
            e(x)
            nmf[0] += 1
            if pend and (r - m) >= MINB and nmf[0] >= P['sp']:
                eg(pend.pop(0)); nmf[0] = 0
            else:
                k = try_reads(m, P['rb'] if (r - m) >= P['lo'] else 2)
                if k <= 1 and post and post[0][0] <= len(A): eg(post.pop(0)[1])
        for g in frags[m].get('post', []): post.append((len(A) + 9, g))
        for tag in frags[m].get('flush', []):
            pass
    for g in pend: eg(g)
    if post and post[0][0] > len(A): e("s_nop 7")
    for _, g in post: eg(g)

e("; Kernarg: x, k_cache, v_cache, wq, wo, out, debug, ws (8-byte pointers)")
e(f"; @launch kernel={KN} grid=(256,1,1) block=(256,1,1) lds={LDS}")
e(f"; @launch kernel={K2N} grid=(256,1,1) block=(512,1,1) lds=8192")
e('.amdgcn_target "amdgcn-amd-amdhsa--gfx950"')
e(".text"); e(f".globl {KN}"); e(".p2align 8"); e(f".type {KN},@function"); e(f"{KN}:")
e("s_cmp_ge_u32 s2, 256"); e("s_cbranch_scc1 L_done")
stamp()
e("s_load_dwordx16 s[48:63], s[0:1], 0")
e(f"v_lshrrev_b32 v{vT0}, 6, v0")
e(f"v_and_b32 v{vL}, 63, v0")
e(f"v_readfirstlane_b32 s3, v{vT0}")
if P['cpf']:
    e("s_getpc_b64 s[90:91]")
    e("L_pc0:")
    e(f"s_lshr_b32 s{sA0}, s2, 3"); e(f"s_lshl_b32 s{sA0}, s{sA0}, 11")
    e(f"v_and_b32 v1, 3, v0"); e(f"v_lshl_add_u32 v1, v{vT0}, 2, v1"); e(f"v_lshlrev_b32 v1, 7, v1"); e(f"v_add_u32 v1, s{sA0}, v1")
    e(f"v_min_u32 v{vCP}, L_codeend-L_pc0-4, v1")
    e(f"global_load_dword v2, v{vCP}, s[90:91]")
    vm.issue("cp", 1)
e(f"s_and_b32 s{sH}, s2, 7"); e(f"s_lshr_b32 s{sB}, s2, 3")
e(f"s_and_b32 s{sHALF}, s{sB}, 1"); e(f"s_lshl_b32 s{sH}, s{sH}, 1"); e(f"s_add_u32 s{sH}, s{sH}, s{sHALF}")
e(f"s_lshr_b32 s{sHALF}, s{sB}, 1"); e(f"s_and_b32 s{sHALF}, s{sHALF}, 1")
e(f"s_lshr_b32 s{sB}, s{sB}, 2")
e(f"v_lshlrev_b32 v{vT1}, 4, v{vL}")
e(f"v_mov_b32 v{vSP}, 0x40000000")
e(f"v_cmp_gt_u32 vcc, 56, v{vL}")
e(f"s_mul_i32 s{sW8}, s3, {8 * PIECE}"); e(f"s_mul_i32 s{sW4}, s3, {4 * PIECE}")
e(f"v_cndmask_b32 v{vXD}, v{vSP}, v{vT1}, vcc")
e(f"s_mul_i32 s{sXA}, s3, {16 * 896}"); e(f"s_mul_i32 s{sX8}, s3, {4 * 896}")
e(f"s_mul_i32 s{sA0}, s{sHALF}, {64 * 896}"); e(f"s_add_u32 s{sA4}, s{sXA}, {64 * 896}")
e(f"s_add_u32 s{sXA}, s{sXA}, s{sA0}"); e(f"s_sub_u32 s{sA4}, s{sA4}, s{sA0}")
e(f"s_mul_i32 s{sA0}, s{sB}, {144 * 896}")
e("s_waitcnt lgkmcnt(0)")
mksrd(sX, 48, 49, f"s{sA0}", 144 * 896)
for T in range(2):
    for q in range(16):
        e(f"s_add_u32 m0, s{sW8}, {((2 * T + (q >> 3) + 1) % 4) * SLOT + (q & 7) * PIECE}")
        e(f"s_add_u32 s{sT0}, s{[sXA, sA4][T]}, {q * 896}")
        e(f"buffer_load_dwordx4 v{vXD}, {srd(sX)}, s{sT0} offen lds")
    vm.issue(f"x{T}", 16)
for k in range(4):
    e(f"s_add_u32 m0, s{sW4}, {XSP + k * PIECE}")
    e(f"s_add_u32 s{sT0}, s{sX8}, {(128 + k) * 896}")
    e(f"buffer_load_dwordx4 v{vXD}, {srd(sX)}, s{sT0} offen lds")
vm.issue("x2", 4)
e(f"s_lshl_b32 s{sPI}, s{sB}, 4"); e(f"s_add_u32 s{sPI}, s{sPI}, s{sH}")
e(f"s_lshl_b32 s{sPI}, s{sPI}, 1"); e(f"s_add_u32 s{sPI}, s{sPI}, s{sHALF}")
e(f"s_lshl_b32 s{sKVB}, s{sPI}, 19")
e(f"s_lshl_b32 s{sA0}, s{sH}, 9")
e(f"s_add_u32 s{sWQ}, s54, s{sA0}"); e(f"s_addc_u32 s{sWQ+1}, s55, 0"); e(f"s_sub_u32 s{sWQ+2}, {448 * 8192}, s{sA0}"); e(f"s_mov_b32 s{sWQ+3}, 0x20000")
mksrd(sK, 50, 51, f"s{sKVB}", 1 << 19); mksrd(sV, 52, 53, f"s{sKVB}", 1 << 19)
e(f"s_mul_i32 s{sA0}, s{sH}, {256 * 896}"); mksrd(sWO, 56, 57, f"s{sA0}", 256 * 896)
e(f"s_lshr_b32 s{sA0}, s{sPI}, 1"); e(f"s_lshl_b32 s{sA0}, s{sA0}, 17"); mksrd(sY, 62, 63, f"s{sA0}", YSZ)
e(f"s_lshl_b32 s{sA0}, s{sPI}, 16"); e(f"s_add_u32 s{sA0}, s{sA0}, {XOFF}"); mksrd(sXO, 62, 63, f"s{sA0}", 65536)
e(f"s_lshl_b32 s{sFL}, s3, 7"); e(f"s_add_u32 s{sFL}, s{sFL}, 61440")
e(f"v_lshlrev_b32 v{vF0}, 16, v{vL}"); e("v_mov_b32 v4, 0")
e(f"buffer_store_dword v4, v{vF0}, {srd(sXO)}, s{sFL} offen sc1")
vm.issue("fl", 1)
e(f"s_mov_b32 s{sC}, {f2h(CS)}"); e(f"s_mov_b32 s{sIC}, {f2h(1.0 / CS)}"); e(f"s_mov_b32 s{sTH}, {f2h(THR / CS)}")
e(f"s_mul_i32 s{sA0}, s3, 5"); e(f"s_sub_u32 s{sA0}, s{sA0}, 4"); e("s_cmp_eq_u32 s3, 0"); e(f"s_cselect_b32 s{sA0}, 0, s{sA0}")
e(f"s_mul_i32 s{sP0}, s{sA0}, {PIECE}"); e(f"s_mul_i32 s{sWOOFF}, s{sA0}, 896"); e(f"s_mul_i32 s{sWO8}, s3, {8 * 896}")
e(f"s_lshl_b32 s{sA0}, s{sA0}, 10")
e(f"v_add_u32 v{vD10}, s{sA0}, v{vT1}")
e(f"v_lshl_add_u32 v{vD8}, v{vT0}, 12, v{vT1}")
e(f"v_add_u32 v{vSP}, {SPARE}, v{vT1}")
e(f"v_lshrrev_b32 v{vT1}, 5, v{vL}"); e(f"v_lshlrev_b32 v{vT1}, 2, v{vT1}")
e(f"v_lshl_add_u32 v{vT1}, v{vT0}, 4, v{vT1}"); e(f"v_lshlrev_b32 v{vDW}, 13, v{vT1}")
e(f"v_and_b32 v{vT1}, 31, v{vL}"); e(f"v_lshl_add_u32 v{vDW}, v{vT1}, 4, v{vDW}")
e(f"v_lshrrev_b32 v{vT1}, 3, v{vL}"); e(f"v_mul_u32_u24 v{vDO}, {32 * 896}, v{vT1}")
e(f"v_and_b32 v{vT1}, 7, v{vL}"); e(f"v_lshl_add_u32 v{vDO}, v{vT1}, 4, v{vDO}")
e(f"v_lshrrev_b32 v{vT1}, 2, v{vL}"); e(f"v_mul_u32_u24 v{vWB}, {PIECE}, v{vT1}")
e(f"v_and_b32 v{vT1}, 3, v{vL}"); e(f"v_lshl_add_u32 v{vWB}, v{vT1}, 3, v{vWB}")
e(f"v_and_b32 v{vT1}, 7, v{vL}"); e(f"v_mul_u32_u24 v{vKB}, {PIECE}, v{vT1}")
e(f"v_lshrrev_b32 v{vT1}, 4, v{vL}"); e(f"v_lshl_add_u32 v{vKB}, v{vT1}, 4, v{vKB}")
e(f"v_bfe_u32 v{vT1}, v{vL}, 3, 1")
e(f"v_mul_u32_u24 v{vKR}, {SLOT}, v{vT1}"); e(f"v_add_u32 v{vWC}, s{sW8}, v{vKB}")
e(f"v_mul_u32_u24 v{vW9}, {3 * SLOT}, v{vT1}"); e(f"v_sub_u32 v{vW9}, v{vWC}, v{vW9}"); e(f"v_add_u32 v{vW9}, {3 * SLOT}, v{vW9}")
e(f"v_add_u32 v{vKR}, v{vKR}, v{vWC}"); e(f"v_add_u32 v{vKR}, {SLOT}, v{vKR}")
e(f"v_mul_u32_u24 v{vVR}, {8 * PIECE}, v{vT1}"); e(f"v_add_u32 v{vVR}, v{vVR}, v{vKB}"); e(f"v_add_u32 v{vVR}, {XSP}, v{vVR}")
e(f"v_lshl_add_u32 v{vKB}, v{vT1}, 9, v{vKB}")
e(f"v_bfe_u32 v{vT1}, v{vL}, 2, 3"); e(f"v_mul_u32_u24 v{vVB}, {PIECE}, v{vT1}")
e(f"v_lshrrev_b32 v{vT1}, 5, v{vL}"); e(f"v_lshl_add_u32 v{vVB}, v{vT1}, 9, v{vVB}")
e(f"v_and_b32 v{vT1}, 3, v{vL}"); e(f"v_lshl_add_u32 v{vVB}, v{vT1}, 3, v{vVB}")
e(f"s_lshl_b32 s{sA1}, s3, 7")
early = []
mksrd(sDB, 60, 61, 0, 256)
e(f"s_and_b32 s{sT0}, s{sPI}, 3"); e(f"s_lshl_b32 s{sT0}, s{sT0}, 3"); e(f"s_lshl_b32 s{sT0}, 1, s{sT0}")
e(f"v_mov_b32 v{vTP}, s{sT0}"); e(f"s_and_b32 s{sEV}, s{sPI}, 0xfc")
e("s_cmp_eq_u32 s3, 0"); e(f"s_cselect_b32 s{sEV}, s{sEV}, 0x10000")
for T in range(2):
    e(f"s_waitcnt vmcnt({vm.wait({f'x{T}'})})")
    for s in range(14): e(f"ds_read_b128 {ar(56 * T + 4 * s)}, v{[vKR, vW9][T]} offset:{64 * s}")
    e("s_waitcnt lgkmcnt(0)")
    for tau in (2 * T, 2 * T + 1):
        if T == 1 and P['early']: early += dma_w(tau)
        else:
            for g in dma_w(tau): eg(g)
frags = []
for s in range(14):
    tau, en = s >> 1, s & 1
    for T in range(20):
        own = T < 16
        col = T if own else T - 16
        base = vWC if own else vW9
        def reads(fb, base=base, en=en, col=col):
            return [f"ds_read_b64_tr_b16 {ar(fb + 2 * v, 2)}, v{base} offset:{en * HALF + v * 512 + 32 * col}" for v in range(2)]
        def mf(fb, own=own, col=col, s=s):
            tl = [(0, 4 * col), (1, 64 + 4 * col)] if own else [(2, 128 + 4 * col)]
            return [f"{MF} {vr(acc)}, {ar(fb)}, {ar(56 * X + 4 * s)}, {'0' if s == 0 else vr(acc)}" for X, acc in tl]
        frags.append(dict(tile=tau, reads=reads, mf=mf))
def q_boundary(tau):
    pre = [f"s_waitcnt vmcnt({vm.wait({f't{tau}'})}) lgkmcnt(0)", "s_barrier",
           f"v_add_u32 v{vWC}, {((tau + 1) % 4) * SLOT}, v{vWB}", f"v_add_u32 v{vW9}, s{sA1}, v{vWC}"]
    post = []
    if tau in (4,): pre += stampi()
    pre += stampi(1)
    if tau == 0: pre += [f"ds_read_b128 {ar(112 + 4 * s)}, v{vVR} offset:{64 * s}" for s in range(14)]
    if tau >= 1:
        n = tau + 3
        post = dma_w(n) if n < 7 else dma_kv8(n - 7)
    if tau == 0: post = early + [([f"buffer_atomic_or v{vTP}, v{vF0}, {srd(sDB)}, s{sEV} offen sc1"], "da")]
    if P['tp']:
        sched = {1: {0: [0], 1: [1], 2: [], 3: [2], 4: [3], 5: [], 6: [4]},
                 2: {0: [0, 1], 1: [2], 2: [3], 3: [4], 4: [], 5: [5], 6: []},
                 3: {0: [0], 1: [1], 2: [2], 3: [3], 4: [4], 5: [5], 6: [6]}}[P['tp']]
        for t in sched[tau]: post = post + touch(t)
    return pre, post
stream_phase(frags, q_boundary)
stamp()
e("s_nop 7")
def cvt4(src, dst):
    return [f"v_cvt_pk_bf16_f32 v{dst+i}, v{src+2*i}, v{src+2*i+1}" for i in range(4)]
def qconv(src, dst):
    for x in cvt4(src, dst): e(x)
def qswap(d):
    e(f"v_permlane32_swap_b32 v{d}, v{d+2}"); e(f"v_permlane32_swap_b32 v{d+1}, v{d+3}")
def qswap2(d):
    e(f"v_permlane16_swap_b32 v{d}, v{d+2}"); e(f"v_permlane16_swap_b32 v{d+1}, v{d+3}")
qconv(128, 144); qconv(136, 148)
e(f"s_lshl_b32 s{sA0}, s3, 11")
e(f"v_add_u32 v{vT1}, s{sA0}, v{vSP}")
qswap(144); qswap(148); qswap2(144); qswap2(148)
e(f"ds_write_b128 v{vT1}, {vr(144)}"); e(f"ds_write_b128 v{vT1}, {vr(148)} offset:1024")
for t in range(16): qconv(8 * t, 152 + 4 * t)
for t in range(16): qswap(152 + 4 * t)
for t in range(16): qswap2(152 + 4 * t)
for i in range(64): e(f"v_accvgpr_write_b32 a{i}, v{152 + i}")
e(f"v_mov_b32 v{vT1}, 0x3f803f80")
for i in range(4): e(f"v_accvgpr_write_b32 a{236 + i}, v{vT1}")
e(f"v_mov_b32 v{vKR}, v{vKB}"); e(f"v_mov_b32 v{vVR}, v{vVB}")
e(f"s_mov_b32 s{sKVOFF}, {3 * 16384}"); e(f"s_mov_b32 s{sFILL}, {3 * SLOT}"); e(f"s_mov_b32 s{sRD}, {SLOT}"); e(f"s_mov_b32 s{sSTEP}, 0")
e(f"s_xor_b32 s{sA0}, s{sPI}, 1"); e(f"s_lshl_b32 s{sA0}, s{sA0}, 16"); e(f"s_add_u32 s{sA0}, s{sA0}, {XOFF}"); mksrd(sXI, 62, 63, f"s{sA0}", 65536)

e(f"s_waitcnt vmcnt({vm.wait({'t7'})}) lgkmcnt(0)"); e("s_barrier")
e("s_cmp_lg_u32 s3, 0"); e("s_cbranch_scc1 L_type1")

QF, KF, VF, LF, ONES = 0, 96, 160, 224, 236
SR, PR, NM, TMP = 192, 216, 228, 234
rare_blocks = []
def kreads():
    return [f"ds_read_b128 {ar(KF + 4 * (2 * t + u))}, v{vKR} offset:{u * 8 * PIECE + 64 * t}" for t in range(8) for u in range(2)]
def vreads():
    return [f"ds_read_b64_tr_b16 {ar(VF + 4 * dt + 2 * u, 2)}, v{vVR} offset:{HALF + u * 8 * PIECE + 32 * dt}" for dt in range(16) for u in range(2)]
def xmax(t0, t1):
    return [f"v_mov_b32 v{t1}, v{t0}", "s_nop 1", f"v_permlane32_swap_b32 v{t0}, v{t1}", "s_nop 1", f"v_max_f32 v{t0}, v{t0}, v{t1}",
            f"v_mov_b32 v{t1}, v{t0}", "s_nop 1", f"v_permlane16_swap_b32 v{t0}, v{t1}", "s_nop 1", f"v_max_f32 v{t0}, v{t0}, v{t1}"]
def softmax(T, ty, first):
    s = SR + 8 * T; p = PR + 4 * T; nm = NM + 2 * T; th = nm + 1; t0 = TMP + 2 * (T & 1); t1 = t0 + 1
    F = []
    def f(x, c=4): F.append((x, c))
    f(f"v_max3_f32 v{t0}, v{s}, v{s+1}, v{s+2}"); f(f"v_max3_f32 v{t1}, v{s+4}, v{s+5}, v{s+6}")
    f(f"v_max3_f32 v{t0}, v{t0}, v{s+3}, v{s+7}"); f(f"v_max_f32 v{t0}, v{t0}, v{t1}")
    if first:
        for x in xmax(t0, t1): f(x)
        f(f"v_mul_f32 v{nm}, s{sC}, v{t0}"); f(f"v_add_f32 v{th}, s{sTH}, v{t0}"); f(f"v_sub_f32 v{nm}, 0, v{nm}")
    else:
        lab = f"{ty}_{T}"
        f([f"v_cmp_gt_f32 vcc, v{t0}, v{th}", f"s_cbranch_vccnz L_rare{lab}", f"L_ret{lab}:"], 8)
        R = [f"L_rare{lab}:"] + xmax(t0, t1)
        R += [f"v_mul_f32 v{t0}, s{sC}, v{t0}", f"v_max_f32 v{t0}, v{t0}, -v{nm}",
              f"v_sub_f32 v{t1}, -v{nm}, v{t0}", f"v_exp_f32 v{t1}, v{t1}",
              f"v_sub_f32 v{nm}, 0, v{t0}", f"v_mov_b32 v{th}, s{sTH}", f"v_fma_f32 v{th}, v{t0}, s{sIC}, v{th}"]
        R += [f"v_mul_f32 v{64 * T + i}, v{64 * T + i}, v{t1}" for i in range(64)]
        for i in range(4):
            R += [f"v_accvgpr_read_b32 v{t0}, a{LF + 4 * T + i}", f"v_mul_f32 v{t0}, v{t0}, v{t1}", f"v_accvgpr_write_b32 a{LF + 4 * T + i}, v{t0}"]
        R += [f"s_branch L_ret{lab}"]
        rare_blocks.append(R)
    for i in range(8): f(f"v_fma_f32 v{s+i}, v{s+i}, s{sC}, v{nm}")
    for i in range(8): f(f"v_exp_f32 v{s+i}, v{s+i}", 8)
    for i in range(4): f(f"v_cvt_pk_bf16_f32 v{p+i}, v{s+2*i}, v{s+2*i+1}")
    return F

def step(NTl, ty, first, vmn, issue_fn):
    M = []
    for T in range(NTl):
        for t in range(8):
            for u in range(2):
                d = SR + 8 * T + 4 * u
                M.append(dict(x=f"{MF} {vr(d)}, {ar(KF + 4 * (2 * t + u))}, {ar(QF + 32 * T + 4 * t)}, {'0' if t == 0 else vr(d)}"))
    nA = len(M)
    for T in range(NTl):
        for dt in range(16):
            d = 64 * T + 4 * dt
            M.append(dict(x=f"{MF} {vr(d)}, {ar(VF + 4 * dt)}, {vr(PR + 4 * T)}, {'0' if first else vr(d)}", needs=f"sm{T}"))
        d = LF + 4 * T
        M.append(dict(x=f"{MF} {ar(d)}, {ar(ONES)}, {vr(PR + 4 * T)}, {'0' if first else ar(d)}"))
    F = [(x, 4, 'vr', -1) for x in vreads()]
    for T in range(NTl - 1):
        F += [(x, c, f"sm{T}", 16 * (T + 1) - 1) for x, c in softmax(T, ty, first)]
    FB_ = [(x, 4, 'kr', -1) for x in kreads()]
    FB_ += [(x, c, f"sm{NTl-1}", nA - 1) for x, c in softmax(NTl - 1, ty, first)]
    pos = {}; cnt = [0]; lastpos = {}
    def em(x):
        for y in (x if isinstance(x, list) else [x]):
            e(y)
            if not y.endswith(':'): cnt[0] += 1
    def fill(budget):
        while F and budget > 0:
            x, c, tag, aft = F[0]
            if aft >= 0 and (aft not in pos or cnt[0] - pos[aft] < 8): return
            em(x); budget -= c; F.pop(0); lastpos[tag] = cnt[0]
    def flush(tag):
        while any(t == tag for _, _, t, _ in F):
            x, c, t, aft = F[0]
            if aft >= 0 and cnt[0] - pos[aft] < 8:
                em(f"s_nop {8 - (cnt[0] - pos[aft]) - 1}"); cnt[0] += 8
            em(x); F.pop(0); lastpos[t] = cnt[0]
    e("s_waitcnt lgkmcnt(0)"); cnt[0] += 1
    for i, m in enumerate(M):
        if i == nA:
            flush('vr')
            em(f"s_waitcnt vmcnt({vmn}) lgkmcnt(0)"); em("s_barrier")
            em(f"v_add_u32 v{vKR}, s{sRD}, v{vKB}"); em(f"v_add_u32 v{vVR}, s{sRD}, v{vVB}")
            issue_fn()
            adv_slot(sFILL); adv_slot(sRD)
            kr = [f for f in FB_ if f[2] == 'kr']; rest = [f for f in FB_ if f[2] != 'kr']
            F[:] = (kr + F + rest) if ty == 0 else (F + rest + kr)
            cnt[0] += 8
        if 'needs' in m:
            flush(m['needs'])
            d = cnt[0] - lastpos[m['needs']]
            if d < 2: em(f"s_nop {1 - d}"); cnt[0] += 1
        em(m['x']); pos[i] = cnt[0]
        fill(8)
    assert not F, F

def main_loop(ty):
    NTl = 3 if ty == 0 else 2
    n = 2 if ty == 0 else 10
    emit_kv_dyn(ty); adv_slot(sFILL)
    if ty == 0:
        for t in range(8): e(f"ds_read_b128 {ar(QF + 64 + 4 * t)}, v{vSP} offset:{1024 * t}")
    for x in kreads(): e(x)
    step(NTl, ty, True, 8 + n, lambda: emit_kv_dyn(ty))
    e(f"s_mov_b32 s{sSTEP}, 1")
    e(f"L_loop{ty}:")
    def iss():
        e(f"s_cmp_lt_u32 s{sSTEP}, 28"); e(f"s_cbranch_scc0 L_wo{ty}")
        emit_kv_dyn(ty)
        e(f"L_wob{ty}:")
    step(NTl, ty, False, 2 * n, iss)
    e(f"s_add_u32 s{sSTEP}, s{sSTEP}, 1"); e(f"s_cmp_lt_u32 s{sSTEP}, 32"); e(f"s_cbranch_scc1 L_loop{ty}")

XST = " sc1"
LV = {0: 229, 2: 233}
RS = {0: 224, 2: 226}
W1, W2, U0 = 234, 236, 246
AF = ['a160', 'a192', 'a224', 'v192']
def freg(base, off, n=4):
    return (vr if base[0] == 'v' else ar)(int(base[1:]) + off, n)
def send(T, pk, so):
    d = 192 + 2 * (T - 1)
    e(f"v_sub_f32 v{d}, 0, v{NM + 2 * T}"); e(f"v_accvgpr_read_b32 v{d+1}, a{LF + 4 * T}")
    for t in range(8):
        qconv(64 * T + 8 * t, pk + 4 * t)
        if t == 4: e(f"s_add_u32 s{sT0}, {so[0]}, 4096")
        e(f"buffer_store_dwordx4 {vr(pk + 4 * t)}, v{vT0}, {srd(sXO)}, {so[0] if t < 4 else f's{sT0}'} offen offset:{1024 * (t & 3)}{XST}")
    e(f"buffer_store_dwordx2 {vr(d, 2)}, v{vT1}, {srd(sXO)}, {so[1]} offen{XST}")
def recv(T, pk, so):
    e(f"buffer_load_dwordx2 {vr(RS[T], 2)}, v{vT1}, {srd(sXI)}, {so[1]} offen{XST}")
    for t in range(8):
        if t == 4: e(f"s_add_u32 s{sT0}, {so[0]}, 4096")
        e(f"buffer_load_dwordx4 {vr(pk + 4 * t)}, v{vT0}, {srd(sXI)}, {so[0] if t < 4 else f's{sT0}'} offen offset:{1024 * (t & 3)}{XST}")
def merge(T, pk, nyoung, ldsv, dma=None, per=3):
    st = RS[T]
    e(f"s_waitcnt vmcnt({nyoung + 8})")
    e(f"v_max_f32 v{U0}, v{st}, -v{NM + 2 * T}")
    e(f"v_sub_f32 v{W1}, -v{NM + 2 * T}, v{U0}"); e(f"v_sub_f32 v{W2}, v{st}, v{U0}")
    e(f"v_exp_f32 v{W1}, v{W1}"); e(f"v_exp_f32 v{W2}, v{W2}")
    e(f"v_mul_f32 v{U0}, v{LV[T]}, v{W1}"); e(f"v_fma_f32 v{U0}, v{st+1}, v{W2}, v{U0}")
    e(f"v_rcp_f32 v{U0}, v{U0}"); e("s_nop 0")
    e(f"v_mul_f32 v{W1}, v{W1}, v{U0}"); e(f"v_mul_f32 v{W2}, v{W2}, v{U0}")
    e(f"v_mov_b32 v{W1+1}, v{W1}"); e(f"v_mov_b32 v{W2+1}, v{W2}")
    for t in range(8):
        e(f"s_waitcnt vmcnt({nyoung + 7 - t})")
        for j in range(4):
            y = pk + 4 * t + j; o = 64 * T + 8 * t + 2 * j; u = U0 + 2 * (j & 1)
            e(f"v_pk_mul_f32 {vr(o, 2)}, {vr(o, 2)}, {vr(W1, 2)}")
            e(f"v_lshlrev_b32 v{u}, 16, v{y}"); e(f"v_and_b32 v{u+1}, 0xffff0000, v{y}")
            e(f"v_pk_fma_f32 {vr(o, 2)}, {vr(u, 2)}, {vr(W2, 2)}, {vr(o, 2)}")
        for j in range(4):
            o = 64 * T + 8 * t + 2 * j
            e(f"v_cvt_pk_bf16_f32 v{pk + 4 * t + j}, v{o}, v{o+1}")
        e(f"ds_write_b128 v{ldsv}, {vr(pk + 4 * t)} offset:{1024 * t}")
        for _ in range(per):
            if dma:
                for y in dma.pop(0)[0]: e(y)
                nyoung += 1
def xaddr():
    e(f"v_lshlrev_b32 v{vT0}, 4, v{vL}"); e(f"v_lshlrev_b32 v{vT1}, 3, v{vL}")
    e(f"s_lshl_b32 s{sA0}, s3, 13"); e(f"s_lshl_b32 s{sA1}, s3, 9"); e(f"s_add_u32 s{sA1}, s{sA1}, 40960")
    e(f"s_mov_b32 s{sA2}, 32768"); e(f"s_mov_b32 s{sA3}, {40960 + 2048}")
    e(f"s_lshl_b32 s{sA4}, s3, 5"); e(f"v_add_u32 v{vWB}, s{sA4}, v{vWB}")
def wo_reads(slot_v, base):
    return [f"ds_read_b64_tr_b16 {freg(base, 4 * t + 2 * v, 2)}, v{slot_v} offset:{v * HALF + 128 * t}" for t in range(8) for v in range(2)]
def spin(lab, srdn, soff, op):
    e(f"s_mov_b32 s{sSTEP}, 0")
    e(f"{lab}:")
    e(f"{op} v238, v{vF0}, {srd(srdn)}, {soff} offen sc1")
    e("s_waitcnt vmcnt(0)")
    e(f"v_readfirstlane_b32 s{sT0}, v238")
    e(f"s_add_u32 s{sSTEP}, s{sSTEP}, 1")
    e(f"s_cmp_eq_u32 s{sT0}, 1"); e(f"s_cbranch_scc1 {lab}_ok")
    e(f"s_sleep {P['slp']}")
    e(f"s_cmp_lt_u32 s{sSTEP}, 0x200000"); e(f"s_cbranch_scc1 {lab}")
    e(f"{lab}_ok:")
def exchange(ty):
    xaddr()
    if ty == 1:
        e(f"s_xor_b32 s{sT0}, s{sPI}, 1"); e("s_cmp_eq_u32 s3, 1"); e(f"s_cselect_b32 s{sT0}, s{sT0}, 0x10000")
        e(f"buffer_load_ubyte v{vDW}, v{vF0}, {srd(sDB)}, s{sT0} offen sc1")
    send(1, 64, (f"s{sA0}", f"s{sA1}"))
    if ty == 0: send(2, 96, (f"s{sA2}", f"s{sA3}"))
    e(f"v_accvgpr_read_b32 v{LV[0]}, a{LF}")
    if ty == 0: e(f"v_accvgpr_read_b32 v{LV[2]}, a{LF + 8}")
    e(f"v_add_u32 v{vWC}, {2 * SLOT}, v{vWB}")
    e("v_mov_b32 v238, 1")
    if ty == 0: stamp(3)
    e("s_waitcnt vmcnt(0) lgkmcnt(0)")
    e(f"buffer_store_dword v238, v{vF0}, {srd(sXO)}, s{sFL} offen sc1")
    e("s_barrier")
    if ty == 0: stamp(3)
    for c in range(4):
        for x in wo_reads(vWB if c < 2 else vWC, AF[c]):
            if c & 1:
                off = int(x.split('offset:')[1]); x = x.split('offset:')[0] + f"offset:{off + SLOT}"
            e(x)
    e(f"v_add_u32 v{vSP}, {OAREA}, v{vT0}"); e(f"v_add_u32 v{vWC}, s{sA0}, v{vSP}"); e(f"v_add_u32 v{vW9}, 32768, v{vSP}")
    if ty == 1:
        e("s_cmp_lg_u32 s3, 1"); e("s_cbranch_scc1 L_dpoll_ok")
        e(f"v_readfirstlane_b32 s{sT0}, v{vDW}")
        e(f"s_xor_b32 s{sT1}, s{sPI}, 1")
        e(f"s_cmp_eq_u32 s{sT0}, 1"); e("s_cbranch_scc1 L_dpoll_ok")
        spin("L_dpoll", sDB, f"s{sT1}", "buffer_load_ubyte")
    e("s_waitcnt lgkmcnt(0)"); e("s_barrier")
    spin(f"L_fpoll{ty}", sXI, f"s{sFL}", "buffer_load_dword")
    if ty == 0: stamp(3)
    recv(0, 64, (f"s{sA0}", f"s{sA1}"))
    if ty == 0: recv(2, 96, (f"s{sA2}", f"s{sA3}"))
    dma = dma_wo8(4) + dma_wo8(5) + dma_wo8(6)
    if ty == 0:
        merge(0, 64, 9, vWC, dma, 2); merge(2, 96, 16, vW9, dma, 1)
    else:
        merge(0, 64, 0, vWC, dma, 3)
    assert not dma

main_loop(0)
stamp(); stamp(3)
exchange(0)
e("s_branch L_tail")
e(f"L_wo0:"); emit_wo_dyn(0); e("s_branch L_wob0")
e("L_type1:")
main_loop(1)
exchange(1)
e("L_tail:")
stamp(3)
YA, YD = 0, 40
e(f"s_mul_i32 s{sA0}, s{sHALF}, {56 * 1024}"); e(f"s_mul_i32 s{sA1}, s3, {14 * 1024}"); e(f"s_add_u32 s{sA0}, s{sA0}, s{sA1}")
e(f"s_lshl_b32 s{sA2}, s3, 12"); e(f"s_add_u32 s{sA2}, s{sA2}, {112 * 1024}")
e(f"s_cmp_eq_u32 s{sHALF}, 0"); e(f"s_cselect_b32 s{sA2}, s{sA2}, 0x40000000")
e(f"v_add_u32 v{vWC}, {2 * SLOT}, v{vWB}")
e("s_waitcnt lgkmcnt(0)"); e("s_barrier")
def bread(t): return [f"ds_read_b128 {ar(32 * X + 4 * t)}, v{vSP} offset:{8192 * X + 1024 * t}" for X in range(5)]
for x in bread(0) + bread(1): e(x)
fill = []
nst = 0
AFc = AF + ['a160', 'a192', 'a224']
for c in range(7):
    if c == 3:
        e(f"s_waitcnt vmcnt({nst})"); e("s_barrier")
        rd = wo_reads(vWB, 'a160') + [x.split('offset:')[0] + f"offset:{int(x.split('offset:')[1]) + SLOT}" for x in wo_reads(vWB, 'a192')] + wo_reads(vWC, 'a224')
        fill = [(0, [x], 0) for x in rd[:16]] + fill + [(0, [x], 0) for x in rd[16:]]
    for t in range(8):
        if c == 0:
            e(f"s_waitcnt lgkmcnt({5 if t < 7 else 0})")
            nb = bread(t + 2) if t + 2 < 8 else []
        if c >= 4 and t == 0:
            need = I(f"{MF} v[0:3], {freg(AFc[c], 0, 32)}, v[0:3], 0", 0).uses
            while any(I(y, 0).defs & need for f in fill for y in f[1]):
                f = fill.pop(0)
                if f[0] > len(A): e("s_nop 7")
                for y in f[1]: e(y)
                nst += f[2]
            e("s_waitcnt lgkmcnt(0)")
        for X in range(5):
            acc = vr(YA + 20 * (c & 1) + 4 * X)
            x = f"{MF} {acc}, {freg(AFc[c], 4 * t)}, {ar(32 * X + 4 * t)}, {'0' if t == 0 else acc}"
            dd = I(x, 0).defs
            while any(I(y, 0).uses & dd for f in fill for y in f[1]):
                f = fill.pop(0); assert f[0] <= len(A)
                for y in f[1]: e(y)
                nst += f[2]
            e(x)
            if c == 0 and nb: e(nb.pop(0))
            elif fill and fill[0][0] <= len(A):
                f = fill.pop(0)
                for y in f[1]: e(y)
                nst += f[2]
    at = len(A) + 9
    new = []
    for j in range(2):
        src = YA + 20 * (c & 1) + 8 * j; dst = YD + 4 * (2 * (c & 1) + j)
        cv = cvt4(src, dst)
        new += [(at, cv[0:2], 0), (at, cv[2:4], 0),
                 (at, [f"s_add_u32 s{sT1}, s{sA0}, {1024 * (2 * c + j)}", f"buffer_store_dwordx4 {vr(dst)}, v{vT0}, {srd(sY)}, s{sT1} offen{YST}"], 1)]
    src = YA + 20 * (c & 1) + 16; dst = YD + 16 + 2 * (c & 1)
    new.append((at, [f"v_cvt_pk_bf16_f32 v{dst}, v{src}, v{src+1}", f"v_cvt_pk_bf16_f32 v{dst+1}, v{src+2}, v{src+3}"], 0))
    if (c & 1) or c == 6:
        new.append((at, [f"buffer_store_dwordx4 {vr(YD + 16)}, v{vT0}, {srd(sY)}, s{sA2} offen offset:{1024 * (c >> 1)}{YST}"], 1))
    fill += new
e("s_nop 7")
for f in fill:
    for y in f[1]: e(y)
stamp(); stamp(3)
if P['stamps']:
    e("s_waitcnt vmcnt(0)")
    stamp(); stamp(3)
    e("s_waitcnt lgkmcnt(0)")
    e("s_cmp_lg_u32 s3, 0"); e("s_cbranch_scc1 L_done")
    e("s_lshl_b32 s86, s2, 6"); e(f"s_add_u32 s86, s86, {WS - 256 * 64}")
    e("s_add_u32 s92, s62, s86"); e("s_addc_u32 s93, s63, 0"); e("s_mov_b32 s94, 64"); e("s_mov_b32 s95, 0x20000")
    e(f"v_lshlrev_b32 v{vT0}, 6, v{vL}")
    for i in range(nstamp[0]):
        e(f"v_mov_b32 v0, s{64 + 2 * i}"); e(f"v_mov_b32 v1, s{65 + 2 * i}")
        e(f"buffer_store_dwordx2 v[0:1], v{vT0}, s[92:95], 0 offen offset:{8 * i}"); e("s_nop 1")
e("L_done:"); e("s_endpgm")
e(f"L_wo1:"); emit_wo_dyn(1); e("s_branch L_wob1")
for R in rare_blocks:
    for x in R: e(x)

K2NT = [" ", " nt", " sc1"][P['k2nt']]
e(f".globl {K2N}"); e(".p2align 8"); e(f".type {K2N},@function"); e(f"{K2N}:")
e("s_cmp_ge_u32 s2, 256"); e("s_cbranch_scc1 L2_done")
if P['stamps'] and P['sg'] == 0: e("s_memrealtime s[40:41]")
e("s_load_dwordx2 s[6:7], s[0:1], 56"); e("s_load_dwordx2 s[4:5], s[0:1], 40")
e("v_lshrrev_b32 v1, 6, v0"); e("v_and_b32 v2, 63, v0")
e("v_readfirstlane_b32 s3, v1")
e("v_and_b32 v10, 0xff, v0"); e("v_lshlrev_b32 v10, 4, v10")
e("s_lshr_b32 s15, s3, 2")
e("s_lshr_b32 s9, s2, 5"); e("s_and_b32 s10, s2, 31")
e("s_lshl_b32 s12, s9, 4"); e("s_lshl_b32 s13, s15, 3"); e("s_add_u32 s12, s12, s13")
e("s_lshl_b32 s13, s12, 17"); e("s_lshl_b32 s14, s10, 12"); e("s_add_u32 s13, s13, s14")
e("s_waitcnt lgkmcnt(0)")
e("s_add_u32 s20, s6, s13"); e("s_addc_u32 s21, s7, 0"); e(f"s_mov_b32 s22, {7 * YSZ + 4096}"); e("s_mov_b32 s23, 0x20000")
for i in range(8):
    e(f"s_mov_b32 s28, {i * YSZ}")
    e(f"buffer_load_dwordx4 {vr(16 + 4 * i)}, v10, s[20:23], s28 offen{K2NT}")
e("s_mov_b32 s24, s4"); e("s_mov_b32 s25, s5"); e(f"s_mov_b32 s26, {8 * 144 * 448 * 2}"); e("s_mov_b32 s27, 0x20000")
e("s_lshl_b32 s10, s10, 2"); e("s_and_b32 s8, s3, 3"); e("s_add_u32 s10, s10, s8")
e("s_cmp_ge_u32 s10, 112"); e("s_cbranch_scc1 L2_t8")
e(f"s_mul_hi_u32 s11, s10, {(2**32 + 13) // 14}")
e("s_mul_i32 s29, s11, 14"); e("s_sub_u32 s29, s10, s29")
e("s_lshr_b32 s32, s29, 1"); e("s_lshl_b32 s32, s32, 2"); e("s_and_b32 s33, s11, 3"); e("s_add_u32 s32, s32, s33")
e("s_and_b32 s33, s11, 4"); e("s_and_b32 s29, s29, 1"); e("s_lshl_b32 s29, s29, 1"); e("s_add_u32 s33, s33, s29")
e(f"s_mul_i32 s30, s33, {16 * 896}"); e("s_lshl_b32 s32, s32, 5"); e("s_add_u32 s30, s30, s32")
e(f"s_add_u32 s31, s30, {16 * 896}")
e("s_branch L2_go")
e("L2_t8:")
e("s_sub_u32 s29, s10, 112")
e("s_lshr_b32 s32, s29, 2"); e("s_and_b32 s33, s29, 3")
e("s_lshl_b32 s30, s33, 3"); e("s_add_u32 s30, s30, s32"); e("s_lshl_b32 s30, s30, 5"); e(f"s_add_u32 s30, s30, {128 * 896}")
e("s_add_u32 s31, s30, 128")
e("s_cmp_eq_u32 s33, 3"); e("s_cselect_b32 s31, 0x40000000, s31")
e("L2_go:")
e("v_and_b32 v3, 15, v2"); e("s_mul_i32 s13, s9, 144"); e("v_add_u32 v4, s13, v3"); e("v_mul_u32_u24 v7, 896, v4")
e("v_lshrrev_b32 v8, 4, v2"); e("v_lshl_add_u32 v7, v8, 3, v7")
AC = 48
for i in range(8):
    e(f"s_waitcnt vmcnt({7 - i})")
    for j in range(4):
        y = 16 + 4 * i + j
        if i == 0:
            e(f"v_lshlrev_b32 v{AC + 2 * j}, 16, v{y}"); e(f"v_and_b32 v{AC + 1 + 2 * j}, 0xffff0000, v{y}")
        else:
            u = 12 + 2 * (j & 1)
            e(f"v_lshlrev_b32 v{u}, 16, v{y}"); e(f"v_and_b32 v{u+1}, 0xffff0000, v{y}")
            e(f"v_pk_add_f32 {vr(AC + 2 * j, 2)}, {vr(AC + 2 * j, 2)}, {vr(u, 2)}")
e("s_cmp_eq_u32 s15, 0"); e("s_cbranch_scc1 L2_lo")
e(f"ds_write_b128 v10, {vr(AC)}"); e(f"ds_write_b128 v10, {vr(AC + 4)} offset:4096")
e("s_waitcnt lgkmcnt(0)"); e("s_barrier"); e("s_endpgm")
e("L2_lo:")
e("s_barrier")
e(f"ds_read_b128 {vr(16)}, v10"); e(f"ds_read_b128 {vr(20)}, v10 offset:4096")
e("s_waitcnt lgkmcnt(0)")
for j in range(4): e(f"v_pk_add_f32 {vr(AC + 2 * j, 2)}, {vr(AC + 2 * j, 2)}, {vr(16 + 2 * j, 2)}")
for j in range(4): e(f"v_cvt_pk_bf16_f32 v{24 + j}, v{AC + 2 * j}, v{AC + 1 + 2 * j}")
e("buffer_store_dwordx2 v[24:25], v7, s[24:27], s30 offen")
e("buffer_store_dwordx2 v[26:27], v7, s[24:27], s31 offen")
if P['stamps'] and P['sg'] == 0:
    e("s_waitcnt vmcnt(0)"); e("s_memrealtime s[42:43]"); e("s_waitcnt lgkmcnt(0)")
    e("s_cmp_lg_u32 s3, 0"); e("s_cbranch_scc1 L2_done")
    e("s_lshl_b32 s13, s2, 6"); e(f"s_add_u32 s13, s13, {WS - 256 * 64}")
    e("s_add_u32 s36, s6, s13"); e("s_addc_u32 s37, s7, 0"); e("s_mov_b32 s38, 64"); e("s_mov_b32 s39, 0x20000")
    e("v_lshlrev_b32 v1, 6, v2")
    e("v_mov_b32 v4, s40"); e("v_mov_b32 v5, s41"); e("v_mov_b32 v6, s42"); e("v_mov_b32 v7, s43")
    e("buffer_store_dwordx4 v[4:7], v1, s[36:39], 0 offen offset:48")
e("L2_done:"); e("s_endpgm"); e("L_codeend:")

e('.section .rodata,"a"')
for name, nv, acc in ((KN, 512, 256), (K2N, 64, 64)):
    e(".p2align 6"); e(f".amdhsa_kernel {name}")
    e(f"  .amdhsa_next_free_vgpr {nv}"); e("  .amdhsa_next_free_sgpr 102"); e(f"  .amdhsa_accum_offset {acc}")
    e("  .amdhsa_group_segment_fixed_size 0"); e("  .amdhsa_kernarg_size 64"); e("  .amdhsa_user_sgpr_count 2")
    e("  .amdhsa_user_sgpr_kernarg_segment_ptr 1"); e("  .amdhsa_system_sgpr_workgroup_id_x 1"); e(".end_amdhsa_kernel")

text = "\n".join(A) + "\n"
open(P['out'], "w").write(text)
hz = check(text)
for x in hz[:40]: print(x)
print(len(hz), "hazards;", len(A), "lines")
```

```python
import sys
s = open("cdna_kernels/standalone__mha_block_cached__near_ridge.s").read()
def mk(out, tlb, l2):
    A = []; e = A.append
    e(".globl warm_kernel"); e(".p2align 8"); e(".type warm_kernel,@function"); e("warm_kernel:")
    e("s_cmp_ge_u32 s2, 256"); e("s_cbranch_scc1 LW_done")
    e("s_load_dwordx16 s[48:63], s[0:1], 0")
    e("s_and_b32 s80, s2, 7"); e("s_lshr_b32 s81, s2, 3")
    e("s_and_b32 s82, s81, 1"); e("s_lshl_b32 s80, s80, 1"); e("s_add_u32 s80, s80, s82")
    e("s_lshr_b32 s82, s81, 1"); e("s_and_b32 s82, s82, 1"); e("s_lshr_b32 s81, s81, 2")
    e("s_lshl_b32 s83, s81, 4"); e("s_add_u32 s83, s83, s80"); e("s_lshl_b32 s84, s83, 1"); e("s_add_u32 s84, s84, s82"); e("s_lshl_b32 s85, s84, 19")
    e("s_waitcnt lgkmcnt(0)")
    def srd(d, lo, off, size):
        e(f"s_add_u32 s{d}, s{lo}, {off}"); e(f"s_addc_u32 s{d+1}, s{lo+1}, 0"); e(f"s_mov_b32 s{d+2}, {size}"); e(f"s_mov_b32 s{d+3}, 0x20000")
    srd(4, 50, "s85", 1 << 19); srd(8, 52, "s85", 1 << 19)
    srd(12, 48, 0, 8*144*896); srd(16, 54, 0, 448*8192); srd(20, 56, 0, 4096*896); srd(24, 62, 0, 34 << 20)
    if tlb:
        e("v_lshlrev_b32 v1, 11, v0")
        e("v_lshlrev_b32 v1, 12, v0")
        e("buffer_load_dword v10, v1, s[4:7], 0 offen nt"); e("buffer_load_dword v11, v1, s[8:11], 0 offen nt")
        e("v_lshlrev_b32 v2, 14, v0")
        e("buffer_load_dword v12, v2, s[12:15], 0 offen"); e("buffer_load_dword v13, v2, s[16:19], 0 offen"); e("buffer_load_dword v14, v2, s[20:23], 0 offen")
        e("v_lshlrev_b32 v3, 17, v0"); e("v_add_u32 v3, 0xfc00, v3")
        e("buffer_load_dword v15, v3, s[24:27], 0 offen sc1")
    if l2:
        e("s_lshr_b32 s86, s2, 3")
        e("v_lshlrev_b32 v4, 4, v0"); e("s_mul_i32 s87, s86, 32768")
        for i in range(8):
            e(f"buffer_load_dwordx4 v[{20+4*i}:{23+4*i}], v4, s[12:15], s87 offen"); e("s_add_u32 s87, s87, 4096")
        e("v_lshrrev_b32 v5, 6, v0"); e("v_lshlrev_b32 v5, 13, v5"); e("v_and_b32 v6, 63, v0"); e("v_lshl_add_u32 v5, v6, 4, v5")
        e("s_mul_i32 s87, s86, 114688"); e("s_and_b32 s88, s2, 7"); e("s_lshl_b32 s88, s88, 10"); e("s_add_u32 s87, s87, s88")
        for i in range(4):
            e(f"buffer_load_dwordx4 v[{60+4*i}:{63+4*i}], v5, s[16:19], s87 offen"); e("s_add_u32 s87, s87, 32768")
        e("s_and_b32 s88, s2, 7"); e("s_mul_i32 s88, s88, 458752"); e("s_mul_i32 s87, s86, 14336"); e("s_add_u32 s87, s87, s88")
        for i in range(4):
            e(f"buffer_load_dwordx4 v[{80+4*i}:{83+4*i}], v4, s[20:23], s87 offen"); e("s_add_u32 s87, s87, 4096")
    e("s_waitcnt vmcnt(0)")
    e("LW_done:"); e("s_endpgm")
    kd = """.p2align 6
.amdhsa_kernel warm_kernel
  .amdhsa_next_free_vgpr 128
  .amdhsa_next_free_sgpr 102
  .amdhsa_accum_offset 128
  .amdhsa_group_segment_fixed_size 0
  .amdhsa_kernarg_size 64
  .amdhsa_user_sgpr_count 2
  .amdhsa_user_sgpr_kernarg_segment_ptr 1
  .amdhsa_system_sgpr_workgroup_id_x 1
.end_amdhsa_kernel
"""
    l = "; @launch kernel=warm_kernel grid=(256,1,1) block=(256,1,1) lds=0\n"
    base = s.replace('.section .rodata,"a"', "\n".join(A) + '\n.section .rodata,"a"') + kd
    lines = base.split("\n")
    open(out + ".s", "w").write("\n".join(lines[:1]) + "\n" + l + "\n".join(lines[1:]))
    open(out + "e.s", "w").write("\n".join(lines[:3]) + "\n" + l + "\n".join(lines[3:]))
mk("bench/h_w10", 1, 0); mk("bench/h_w11", 1, 1); mk("bench/h_w01", 0, 1)
```

```python
import sys, struct, math
sys.path.insert(0, 'gen')
from hazard import check, I

P = dict(out='standalone__mha_block_cached__near_ridge.s', stamps=0, sg=0, sp=4, slp=2, kv0=4, rot=1, xmap=0, kvfix=0, kgap=5, vend=4, dsp=2, win=10, dspa=5, dspb=6)
for a in sys.argv[1:]:
    k, v = a.split('='); P[k] = v if k == 'out' else int(v)

def f2h(x): return '0x%08x' % struct.unpack('<I', struct.pack('<f', x))[0]
KN = "standalone__mha_block_cached__near_ridge_kernel"
SLOT, PIECE, HALF = 33792, 1056, 16896
SPARE = 4 * SLOT
XSP = SPARE + 8192
LDS = XSP + 16 * PIECE
YSZ = 128 * 1024
XOFF = 128 * YSZ
FLO = 61440
OAREA = 3 * SLOT
WS = 536870912
CS = 0.0625 * math.log2(math.e)
THR = 8.0
OOB = 0x40000000

A = []
def e(s): A.append(s)
def vr(b, n=4): return f"v[{b}:{b+n-1}]"
def ar(b, n=4): return f"a[{b}:{b+n-1}]"
MF = "v_mfma_f32_16x16x32_bf16"

sK, sV, sWQ, sWO, sX, sY, sXO = 4, 8, 12, 16, 20, 24, 28
sXI, sOUT, sYI = 12, 4, 8
sC, sIC, sTH, sSTEP, sKVOFF, sFILL, sRD, sP0, sT0, sT1, sWO8, sWOOFF, sXA, sXB, sW8, sW4 = range(32, 48)
sH, sB, sHALF, sPI, sKW, sA0, sA1, sA2, sA3, sA4 = range(80, 90)
sDB = 92
sFL, sEV, sKX, sK8, sWC = 96, 97, 98, 99, 100
sE = 20
sE11, sS11, sO11 = sXA, sXB, sKW
def srd(b): return f"s[{b}:{b+3}]"
def mksrd(d, lo, hi, off, size):
    e(f"s_add_u32 s{d}, s{lo}, {off}"); e(f"s_addc_u32 s{d+1}, s{hi}, 0"); e(f"s_mov_b32 s{d+2}, {size}"); e(f"s_mov_b32 s{d+3}, 0x20000")
vL, vWB, vWC, vW9, vKB, vVB, vKR, vVR, vD8, vD10, vDW, vDO, vXD, vT0, vT1, vSP = range(255, 239, -1)
vF0, vTP = 239, 238
vXR0, vXR1, vX8B, vX8C, vX8D = 237, 236, 235, 234, 233

nstamp = [0]
def stampi(grp=0):
    if P['stamps'] and (grp == P['sg'] or nstamp[0] == 0) and nstamp[0] < 8:
        i = nstamp[0]; nstamp[0] += 1
        return [f"{'s_memrealtime' if P['stamps'] == 1 else 's_memtime'} s[{64+2*i}:{65+2*i}]"]
    return []
def stamp(*grps):
    for g in (grps or (0,)):
        for x in stampi(g): e(x)

class VM:
    def __init__(s): s.q = []
    def issue(s, tag, n=1): s.q += [tag] * n
    def wait(s, tags):
        last = -1
        for i, t in enumerate(s.q):
            if t in tags: last = i
        return min(63, len(s.q) - 1 - last)
vm = VM()
def eg(g):
    for y in g[0]: e(y)
    if g[1]: vm.issue(g[1])

def wslot(tau): return (1 + (tau + 2) % 3) * SLOT
def adv7(s, unit):
    return [f"s_add_u32 s{s}, s{s}, {unit}", f"s_cmp_ge_u32 s{s}, {7 * unit}", f"s_cselect_b32 s{s}, 0, s{s}"]
def dma_w(tau):
    G = [([f"s_add_u32 m0, s{sW8}, {wslot(tau) + k * PIECE}", f"s_add_u32 s{sT0}, s{sKW}, {((k & 3) + 8 * (k >> 2)) * 8192}",
           f"buffer_load_dwordx4 v{vDW}, {srd(sWQ)}, s{sT0} offen lds"], f"t{tau}") for k in range(8)]
    G[-1] = (G[-1][0] + adv7(sKW, 64 * 8192), G[-1][1])
    return G
def dma_x(n):
    G = []
    for T in range(2):
        for pc in range(2):
            G.append(([f"s_add_u32 m0, s{sW4}, {(n & 1) * HALF + (2 * T + pc) * 1024}", f"s_add_u32 s{sT0}, s{[sXA, sXB][T]}, s{sKX}"]
                      + ([f"s_add_u32 s{sT0}, s{sT0}, {8 * 896}"] if pc else [])
                      + [f"buffer_load_dwordx4 v{vXD}, {srd(sX)}, s{sT0} offen lds"], f"x{n}"))
    G[-1] = (G[-1][0] + adv7(sKX, 128), G[-1][1])
    return G
def x_reads(n):
    return [f"ds_read_b128 {ar(56 * T + 8 * n + 4 * en)}, v{[vXR0, vXR1][en]} offset:{(n & 1) * HALF + 2048 * T}" for T in range(2) for en in range(2)]
def x8_reads(n):
    return [f"v_add_u32 v{vX8C}, s{sK8}, v{vX8B}"] + [f"ds_read_b128 {ar(112 + 8 * n + 4 * en)}, v{vX8C} offset:{64 * en}" for en in range(2)] + adv7(sK8, 128)
def dma_kv8(t):
    slot = (t % 4) * SLOT
    return [([f"s_add_u32 m0, s{sW4}, {slot + half * HALF + 32 * k}", f"s_mov_b32 s{sT0}, {t * 16384}",
              f"buffer_load_dwordx4 v{vD8}, {srd(s_)}, s{sT0} offen offset:{1024 * k} nt lds"], f"kv{t}")
            for half, s_ in ((0, sK), (1, sV)) for k in range(4)]
def dma_wo8(i):
    slot = (i % 4) * SLOT
    G = [([f"s_add_u32 m0, s{sW8}, {slot + k * PIECE}", f"s_add_u32 s{sT0}, s{sA4}, {k * 896}",
           f"buffer_load_dwordx4 v{vDO}, {srd(sWO)}, s{sT0} offen lds"], f"o{i}") for k in range(8)]
    G[0] = ([f"s_add_u32 s{sA4}, s{sWO8}, s{sWC}"] + adv7(sWC, 128) + G[0][0], G[0][1])
    return G
lab_n = [0]
def win(G):
    if not P['win']: return G
    out = []
    for g in G:
        g2 = []
        for x in g:
            if x == "s_nop 0": continue
            if x.startswith("buffer_load"): g2.append(f"s_waitcnt vmcnt({P['win'] - 1})")
            g2.append(x)
        out.append(g2)
    return out
def kv_groups():
    G = []
    for half, s_ in ((0, sK), (1, sV)):
        for k in range(5):
            if k < 4:
                g = [f"s_add_u32 m0, s{sT1}, {half * HALF + 32 * k}", "s_nop 0",
                     f"buffer_load_dwordx4 v{vD10}, {srd(s_)}, s{sKVOFF} offen offset:{1024 * k} nt lds"]
            else:
                g = [f"s_add_u32 m0, s{sT1}, {half * HALF + 4 * PIECE}", f"s_add_u32 s{sT0}, s{sKVOFF}, 4096",
                     f"buffer_load_dwordx4 v{vD10}, {srd(s_)}, s{sT0} offen nt lds"]
            G.append(g)
    G[0] = [f"s_add_u32 s{sT1}, s{sFILL}, s{sP0}"] + G[0]
    lab_n[0] += 1
    G.append(["s_cmp_eq_u32 s3, 3", f"s_cbranch_scc1 L_sk{lab_n[0]}", f"s_add_u32 m0, s{sFILL}, s{sE11}", f"s_add_u32 s{sT0}, s{sKVOFF}, s{sS11}",
              f"buffer_load_dwordx4 v{vD10}, {srd(sE)}, s{sT0} offen nt lds", f"L_sk{lab_n[0]}:"])
    G.append(([f"s_add_u32 s{sKVOFF}, s{sKVOFF}, 16384"] if not P['kvfix'] else []) + adv_slot_l(sFILL))
    return win(G)
def wo_groups():
    G = []
    for half in (0, 1):
        for k in range(5):
            G.append([f"s_add_u32 m0, s{sT1}, {half * HALF + k * PIECE}", f"s_add_u32 s{sT0}, s{sA4}, {(16 * half + k) * 896}",
                      f"buffer_load_dwordx4 v{vDO}, {srd(sWO)}, s{sT0} offen lds"])
    G[0] = [f"s_add_u32 s{sT1}, s{sFILL}, s{sP0}", f"s_add_u32 s{sA4}, s{sWOOFF}, s{sWC}"] + G[0]
    lab_n[0] += 1
    G.append(["s_cmp_eq_u32 s3, 3", f"s_cbranch_scc1 L_sk{lab_n[0]}", f"s_add_u32 m0, s{sFILL}, s{sE11}", f"s_add_u32 s{sT0}, s{sWC}, s{sO11}",
              f"buffer_load_dwordx4 v{vDO}, {srd(sWO)}, s{sT0} offen lds", f"L_sk{lab_n[0]}:"])
    G.append(adv7(sWC, 128) + adv_slot_l(sFILL))
    return win(G)
def adv_slot_l(s):
    return [f"s_add_u32 s{s}, s{s}, {SLOT}", f"s_cmp_ge_u32 s{s}, {4 * SLOT}", f"s_cselect_b32 s{s}, 0, s{s}"]
def adv_slot(s):
    e(f"s_add_u32 s{s}, s{s}, {SLOT}"); e(f"s_cmp_ge_u32 s{s}, {4 * SLOT}"); e(f"s_cselect_b32 s{s}, 0, s{s}")

def stream_phase(frags, boundary, FB=192, NB=16, LA=12, GAP=4, MINB=6):
    n = len(frags)
    r = 0; lds_after = {}; nds = 0
    pend = []
    cur_tile = None; last_read_m = -10**9; rq = []
    done = [0]; nmf = [0]
    def eds(x):
        nonlocal nds
        e(x)
        if x.startswith('ds_'): nds += 1
    def epend():
        g, need = pend.pop(0)
        if need > done[0]:
            c = min(nds - need, 15); e(f"s_waitcnt lgkmcnt({c})"); done[0] = nds - c
        eg(g)
    def hook(h):
        while pend: epend()
        pre, nxt = h()
        if any('lgkmcnt(0)' in x for x in pre): done[0] = nds
        for x in pre: eds(x)
        pend.extend((g, nds if dep else 0) for g, dep in nxt)
        nmf[0] = -2
    def try_reads(m, budget):
        nonlocal r, cur_tile, last_read_m, rq
        did = 0
        while budget > 0:
            if not rq:
                if r >= n or r > m + LA or r - NB >= m: return did
                f = frags[r]
                if f['tile'] != cur_tile:
                    if r > 0 and m < min(last_read_m + GAP, r): return did
                    hook(lambda: boundary(f['tile']))
                    cur_tile = f['tile']
                rq = list(f['reads'](FB + 4 * (r % NB)))
            eds(rq.pop(0)); budget -= 1; did += 1
            if not rq:
                lds_after[r] = nds; last_read_m = m; r += 1
        return did
    try_reads(0, 2 * LA)
    for m in range(n):
        while r <= m: try_reads(m, 2)
        if 'mid' in frags[m] and not rq: hook(frags[m]['mid'])
        assert not ('mid' in frags[m] and rq)
        if lds_after[m] > done[0]:
            cnt = min(nds - lds_after[m], 15)
            e(f"s_waitcnt lgkmcnt({cnt})"); done[0] = nds - cnt
        for x in frags[m]['mf'](FB + 4 * (m % NB)):
            e(x)
            nmf[0] += 1
            if pend and (r - m) >= MINB and nmf[0] >= P['sp']:
                epend(); nmf[0] = 0
            else:
                try_reads(m, 2)
    while pend: epend()

e("; Kernarg: x, k_cache, v_cache, wq, wo, out, debug, ws (8-byte pointers)")
e(f"; @launch grid=(256,1,1) block=(256,1,1) lds={LDS}")
e('.amdgcn_target "amdgcn-amd-amdhsa--gfx950"')
e(".text"); e(f".globl {KN}"); e(".p2align 8"); e(f".type {KN},@function"); e(f"{KN}:")
e("s_cmp_ge_u32 s2, 256"); e("s_cbranch_scc1 L_done")
stamp()
e("s_load_dwordx16 s[48:63], s[0:1], 0")
e(f"v_lshrrev_b32 v{vT0}, 6, v0")
e(f"v_and_b32 v{vL}, 63, v0")
e(f"v_readfirstlane_b32 s3, v{vT0}")
e("s_getpc_b64 s[90:91]")
e("L_pc0:")
e(f"s_lshr_b32 s{sA0}, s2, 3"); e(f"s_lshl_b32 s{sA0}, s{sA0}, 11")
e(f"v_and_b32 v1, 3, v0"); e(f"v_lshl_add_u32 v1, v{vT0}, 2, v1"); e(f"v_lshlrev_b32 v1, 7, v1"); e(f"v_add_u32 v1, s{sA0}, v1")
e(f"v_min_u32 v1, L_codeend-L_pc0-4, v1")
e(f"global_load_dword v2, v1, s[90:91]")
vm.issue("cp")
if P['xmap'] == 0:
    e(f"s_and_b32 s{sH}, s2, 7"); e(f"s_lshr_b32 s{sB}, s2, 3")
    e(f"s_and_b32 s{sHALF}, s{sB}, 1"); e(f"s_lshl_b32 s{sH}, s{sH}, 1"); e(f"s_add_u32 s{sH}, s{sH}, s{sHALF}")
    e(f"s_lshr_b32 s{sHALF}, s{sB}, 1"); e(f"s_and_b32 s{sHALF}, s{sHALF}, 1")
    e(f"s_and_b32 s{sKX}, s{sB}, 3"); e(f"s_lshl_b32 s{sKX}, s{sKX}, 1")
    e(f"s_lshr_b32 s{sB}, s{sB}, 2")
else:
    e(f"s_and_b32 s{sHALF}, s2, 1"); e(f"s_lshr_b32 s{sH}, s2, 1"); e(f"s_and_b32 s{sH}, s{sH}, 15"); e(f"s_lshr_b32 s{sB}, s2, 5")
    e(f"s_and_b32 s{sKX}, s2, 3"); e(f"s_lshl_b32 s{sKX}, s{sKX}, 1")
e(f"s_add_u32 s{sKX}, s{sKX}, s{sB}"); e(f"s_cmp_ge_u32 s{sKX}, 7"); e(f"s_cselect_b32 s{sA0}, 7, 0"); e(f"s_sub_u32 s{sKX}, s{sKX}, s{sA0}")
if not P['rot']: e(f"s_mov_b32 s{sKX}, 0")
e(f"s_lshl_b32 s{sKW}, s{sKX}, 19"); e(f"s_lshl_b32 s{sKX}, s{sKX}, 7"); e(f"s_mov_b32 s{sK8}, s{sKX}")
e(f"v_lshlrev_b32 v{vT1}, 4, v{vL}")
e(f"v_mov_b32 v{vSP}, {OOB}")
e(f"v_cmp_gt_u32 vcc, 56, v{vL}")
e(f"s_mul_i32 s{sW8}, s3, {8 * PIECE}"); e(f"s_mul_i32 s{sW4}, s3, {4 * PIECE}")
e(f"v_cndmask_b32 v{vX8D}, v{vSP}, v{vT1}, vcc")
e(f"v_lshrrev_b32 v3, 3, v{vL}"); e(f"v_mul_u32_u24 v{vXD}, 896, v3"); e("v_and_b32 v3, 6, v3"); e(f"v_and_b32 v4, 7, v{vL}")
e("v_xor_b32 v3, v3, v4"); e(f"v_lshl_add_u32 v{vXD}, v3, 4, v{vXD}")
e(f"v_lshrrev_b32 v3, 5, v{vL}"); e("v_lshlrev_b32 v3, 2, v3")
e(f"v_lshl_add_u32 v3, v{vT0}, 4, v3"); e(f"v_lshlrev_b32 v{vDW}, 13, v3")
e(f"v_and_b32 v3, 31, v{vL}"); e(f"v_lshl_add_u32 v{vDW}, v3, 4, v{vDW}")
e(f"s_mul_i32 s{sXA}, s3, {16 * 896}"); e(f"s_mul_i32 s{sA1}, s3, {4 * 896}")
e(f"s_mul_i32 s{sA0}, s{sHALF}, {64 * 896}"); e(f"s_add_u32 s{sXB}, s{sXA}, {64 * 896}")
e(f"s_add_u32 s{sXA}, s{sXA}, s{sA0}"); e(f"s_sub_u32 s{sXB}, s{sXB}, s{sA0}")
e(f"s_mul_i32 s{sA0}, s{sB}, {144 * 896}"); e(f"s_lshl_b32 s{sA2}, s{sH}, 9")
e("s_waitcnt lgkmcnt(0)")
mksrd(sX, 48, 49, f"s{sA0}", 144 * 896)
e(f"s_add_u32 s{sWQ}, s54, s{sA2}"); e(f"s_addc_u32 s{sWQ+1}, s55, 0"); e(f"s_sub_u32 s{sWQ+2}, {448 * 8192}, s{sA2}"); e(f"s_mov_b32 s{sWQ+3}, 0x20000")
for g in dma_x(0) + dma_w(0): eg(g)
for k in range(4):
    e(f"s_add_u32 m0, s{sW4}, {XSP + k * PIECE}")
    e(f"s_add_u32 s{sT0}, s{sA1}, {(128 + k) * 896}")
    e(f"buffer_load_dwordx4 v{vX8D}, {srd(sX)}, s{sT0} offen lds")
vm.issue("x8", 4)
e(f"s_lshl_b32 s{sPI}, s{sB}, 4"); e(f"s_add_u32 s{sPI}, s{sPI}, s{sH}")
e(f"s_lshl_b32 s{sPI}, s{sPI}, 1"); e(f"s_add_u32 s{sPI}, s{sPI}, s{sHALF}")
e(f"s_lshl_b32 s{sA0}, s{sPI}, 16"); e(f"s_add_u32 s{sA0}, s{sA0}, {XOFF}"); mksrd(sXO, 62, 63, f"s{sA0}", 65536)
e(f"s_lshl_b32 s{sFL}, s3, 7"); e(f"s_add_u32 s{sFL}, s{sFL}, {FLO}")
e(f"v_lshlrev_b32 v{vF0}, 16, v{vL}"); e("v_mov_b32 v4, 0")
e(f"buffer_store_dword v4, v{vF0}, {srd(sXO)}, s{sFL} offen sc1")
vm.issue("fl")
for g in dma_x(1) + dma_w(1): eg(g)
e(f"s_lshl_b32 s{sA0}, s{sPI}, 19")
mksrd(sK, 50, 51, f"s{sA0}", 1 << 19); mksrd(sV, 52, 53, f"s{sA0}", 1 << 19)
e(f"s_mul_i32 s{sA0}, s{sH}, {256 * 896}"); mksrd(sWO, 56, 57, f"s{sA0}", 256 * 896)
e(f"s_lshr_b32 s{sA0}, s{sPI}, 1"); e(f"s_lshl_b32 s{sA0}, s{sA0}, 17"); mksrd(sY, 62, 63, f"s{sA0}", YSZ)
mksrd(sDB, 60, 61, 0, 256)
e(f"s_mov_b32 s{sC}, {f2h(CS)}"); e(f"s_mov_b32 s{sIC}, {f2h(1.0 / CS)}"); e(f"s_mov_b32 s{sTH}, {f2h(THR / CS)}")
e(f"s_mul_i32 s{sA0}, s3, 5"); e(f"s_sub_u32 s{sA0}, s{sA0}, 5"); e("s_cmp_eq_u32 s3, 0"); e(f"s_cselect_b32 s{sA0}, 0, s{sA0}")
e(f"s_mul_i32 s{sP0}, s{sA0}, {PIECE}"); e(f"s_mul_i32 s{sWOOFF}, s{sA0}, 896"); e(f"s_mul_i32 s{sWO8}, s3, {8 * 896}")
e(f"s_mul_i32 s{sWC}, s{sHALF}, {3 * 128}")
e(f"s_lshl_b32 s{sA0}, s{sA0}, 10")
e(f"v_add_u32 v{vD10}, s{sA0}, v{vT1}")
e(f"v_lshl_add_u32 v{vD8}, v{vT0}, 12, v{vT1}")
e(f"v_add_u32 v{vSP}, {SPARE}, v{vT1}")
e(f"v_lshrrev_b32 v{vT1}, 3, v{vL}"); e(f"v_mul_u32_u24 v{vDO}, {32 * 896}, v{vT1}")
e(f"v_and_b32 v{vT1}, 7, v{vL}"); e(f"v_lshl_add_u32 v{vDO}, v{vT1}, 4, v{vDO}")
e(f"v_lshrrev_b32 v{vT1}, 2, v{vL}"); e(f"v_mul_u32_u24 v{vWB}, {PIECE}, v{vT1}")
e(f"v_and_b32 v{vT1}, 3, v{vL}"); e(f"v_lshl_add_u32 v{vWB}, v{vT1}, 3, v{vWB}")
e(f"v_and_b32 v5, 15, v{vL}"); e(f"v_lshrrev_b32 v6, 4, v{vL}"); e("v_and_b32 v7, 6, v5"); e("v_xor_b32 v7, v7, v6")
e(f"v_lshlrev_b32 v{vXR0}, 7, v5"); e(f"v_lshl_add_u32 v{vXR0}, v7, 4, v{vXR0}"); e(f"v_add_u32 v{vXR0}, s{sW4}, v{vXR0}")
e(f"v_xor_b32 v{vXR1}, 64, v{vXR0}")
e(f"v_mul_u32_u24 v{vX8B}, {PIECE}, v5"); e(f"v_lshl_add_u32 v{vX8B}, v6, 4, v{vX8B}"); e(f"v_add_u32 v{vX8B}, {XSP}, v{vX8B}")
e(f"v_and_b32 v{vT1}, 7, v{vL}"); e(f"v_mul_u32_u24 v{vKB}, {PIECE}, v{vT1}")
e(f"v_lshl_add_u32 v{vKB}, v6, 4, v{vKB}")
e(f"v_bfe_u32 v{vT1}, v{vL}, 3, 1"); e(f"v_lshl_add_u32 v{vKB}, v{vT1}, 9, v{vKB}")
e(f"v_bfe_u32 v{vT1}, v{vL}, 2, 3"); e(f"v_mul_u32_u24 v{vVB}, {PIECE}, v{vT1}")
e(f"v_lshrrev_b32 v{vT1}, 5, v{vL}"); e(f"v_lshl_add_u32 v{vVB}, v{vT1}, 9, v{vVB}")
e(f"v_and_b32 v{vT1}, 3, v{vL}"); e(f"v_lshl_add_u32 v{vVB}, v{vT1}, 3, v{vVB}")
e(f"s_lshl_b32 s{sA1}, s3, 7")
e(f"s_and_b32 s{sT0}, s{sPI}, 3"); e(f"s_lshl_b32 s{sT0}, s{sT0}, 3"); e(f"s_lshl_b32 s{sT0}, 1, s{sT0}")
e(f"v_mov_b32 v{vTP}, s{sT0}"); e(f"s_and_b32 s{sEV}, s{sPI}, 0xfc")
e("s_cmp_eq_u32 s3, 0"); e(f"s_cselect_b32 s{sEV}, s{sEV}, 0x10000")

def dep(G, d): return [(g, d) for g in G]
def q_mid(tau):
    n = 2 * tau + 1
    pre = [f"s_waitcnt vmcnt({vm.wait({f'x{n}'})})"] + x_reads(n)
    return pre, (dep(dma_x(n + 2), 1) if n + 2 < 7 else [])
def q_boundary(tau):
    tags = {f't{tau}'}
    n = 2 * tau
    if n < 7: tags.add(f'x{n}')
    if tau == 0: tags |= {'x8'}
    if tau == 1: tags |= {'fl'}
    pre = [f"s_waitcnt vmcnt({vm.wait(tags)}) lgkmcnt(0)", "s_barrier",
           f"v_add_u32 v{vWC}, {wslot(tau)}, v{vWB}", f"v_add_u32 v{vW9}, s{sA1}, v{vWC}"]
    if tau == P['kv0']: pre += stampi()
    pre += stampi(1)
    if n < 7: pre += x_reads(n)
    pre += x8_reads(tau)
    post = []
    if n + 2 < 7: post += dep(dma_x(n + 2), 1)
    if tau + 2 < 7: post += dep(dma_w(tau + 2), 0)
    if tau == 1: post += [(([f"buffer_atomic_or v{vTP}, v{vF0}, {srd(sDB)}, s{sEV} offen sc1"], "da"), 0)]
    if tau == P['kv0']: post += dep(dma_kv8(0), 1)
    if tau >= 5: post += dep(dma_kv8(tau - 4), 0)
    return pre, post
frags = []
for s in range(14):
    tau, en = s >> 1, s & 1
    for T in range(20):
        own = T < 16
        col = T if own else T - 16
        base = vWC if own else vW9
        def reads(fb, base=base, en=en, col=col):
            return [f"ds_read_b64_tr_b16 {ar(fb + 2 * v, 2)}, v{base} offset:{en * HALF + v * 512 + 32 * col}" for v in range(2)]
        def mf(fb, own=own, col=col, s=s):
            tl = [(0, 4 * col), (1, 64 + 4 * col)] if own else [(2, 128 + 4 * col)]
            return [f"{MF} {vr(acc)}, {ar(fb)}, {ar(56 * X + 4 * s)}, {'0' if s == 0 else vr(acc)}" for X, acc in tl]
        f = dict(tile=tau, reads=reads, mf=mf)
        if en == 0 and T == 14 and tau < 3: f['mid'] = (lambda tau=tau: q_mid(tau))
        frags.append(f)
stream_phase(frags, q_boundary)
stamp()
e("s_nop 7")
def cvt4(src, dst):
    return [f"v_cvt_pk_bf16_f32 v{dst+i}, v{src+2*i}, v{src+2*i+1}" for i in range(4)]
def qconv(src, dst):
    for x in cvt4(src, dst): e(x)
def qswap(d):
    e(f"v_permlane32_swap_b32 v{d}, v{d+2}"); e(f"v_permlane32_swap_b32 v{d+1}, v{d+3}")
def qswap2(d):
    e(f"v_permlane16_swap_b32 v{d}, v{d+2}"); e(f"v_permlane16_swap_b32 v{d+1}, v{d+3}")
qconv(128, 144); qconv(136, 148)
e(f"s_lshl_b32 s{sA0}, s3, 11")
e(f"v_add_u32 v{vT1}, s{sA0}, v{vSP}")
qswap(144); qswap(148); qswap2(144); qswap2(148)
e(f"ds_write_b128 v{vT1}, {vr(144)}"); e(f"ds_write_b128 v{vT1}, {vr(148)} offset:1024")
for t in range(16): qconv(8 * t, 152 + 4 * t)
for t in range(16): qswap(152 + 4 * t)
for t in range(16): qswap2(152 + 4 * t)
for i in range(64): e(f"v_accvgpr_write_b32 a{i}, v{152 + i}")
e(f"v_mov_b32 v{vT1}, 0x3f803f80")
for i in range(4): e(f"v_accvgpr_write_b32 a{236 + i}, v{vT1}")
e(f"v_mov_b32 v{vKR}, v{vKB}"); e(f"v_mov_b32 v{vVR}, v{vVB}")
e(f"s_mov_b32 s{sKVOFF}, {3 * 16384}"); e(f"s_mov_b32 s{sFILL}, {3 * SLOT}"); e(f"s_mov_b32 s{sRD}, {SLOT}")
e(f"s_xor_b32 s{sA0}, s{sPI}, 1"); e(f"s_lshl_b32 s{sA0}, s{sA0}, 16"); e(f"s_add_u32 s{sA0}, s{sA0}, {XOFF}"); mksrd(sXI, 62, 63, f"s{sA0}", 65536)
e("s_cmp_eq_u32 s3, 1")
e(f"s_cselect_b32 s{sE}, s{sK}, s{sV}"); e(f"s_cselect_b32 s{sE+1}, s{sK+1}, s{sV+1}"); e(f"s_mov_b32 s{sE+2}, {1 << 19}"); e(f"s_mov_b32 s{sE+3}, 0x20000")
e(f"s_cselect_b32 s{sE11}, {15 * PIECE}, {HALF + 15 * PIECE}".replace(f", {HALF + 15 * PIECE}", f", s{sT0}").replace("s_cselect", f"s_mov_b32 s{sT0}, {HALF + 15 * PIECE}\ns_cselect"))
e(f"s_mov_b32 s{sT0}, {10 * 1024}"); e(f"s_cselect_b32 s{sS11}, {15 * 1024}, s{sT0}")
e(f"s_mov_b32 s{sT0}, {31 * 896}"); e(f"s_cselect_b32 s{sO11}, {15 * 896}, s{sT0}")
e(f"s_waitcnt vmcnt({vm.wait({'kv0'})}) lgkmcnt(0)"); e("s_barrier")
assert vm.wait({'kv1'}) == 8
e("s_cmp_lg_u32 s3, 0"); e("s_cbranch_scc1 L_type1")

QF, KF, VF, LF, ONES = 0, 96, 160, 224, 236
SR, PR, NM, TMP = 192, 216, 228, 234
rare_blocks = []
def kreads():
    return [f"ds_read_b128 {ar(KF + 4 * (2 * t + u))}, v{vKR} offset:{u * 8 * PIECE + 64 * t}" for t in range(8) for u in range(2)]
def vreads():
    return [f"ds_read_b64_tr_b16 {ar(VF + 4 * dt + 2 * u, 2)}, v{vVR} offset:{HALF + u * 8 * PIECE + 32 * dt}" for dt in range(16) for u in range(2)]
def xmax(t0, t1):
    return [f"v_mov_b32 v{t1}, v{t0}", "s_nop 1", f"v_permlane32_swap_b32 v{t0}, v{t1}", "s_nop 1", f"v_max_f32 v{t0}, v{t0}, v{t1}",
            f"v_mov_b32 v{t1}, v{t0}", "s_nop 1", f"v_permlane16_swap_b32 v{t0}, v{t1}", "s_nop 1", f"v_max_f32 v{t0}, v{t0}, v{t1}"]
def softmax(T, ty, first):
    s = SR + 8 * T; p = PR + 4 * T; nm = NM + 2 * T; th = nm + 1; t0 = TMP + 2 * (T & 1); t1 = t0 + 1
    F = []
    def f(x, c=4): F.append((x, c))
    f(f"v_max3_f32 v{t0}, v{s}, v{s+1}, v{s+2}"); f(f"v_max3_f32 v{t1}, v{s+4}, v{s+5}, v{s+6}")
    f(f"v_max3_f32 v{t0}, v{t0}, v{s+3}, v{s+7}"); f(f"v_max_f32 v{t0}, v{t0}, v{t1}")
    if first:
        for x in xmax(t0, t1): f(x)
        f(f"v_mul_f32 v{nm}, s{sC}, v{t0}"); f(f"v_add_f32 v{th}, s{sTH}, v{t0}"); f(f"v_sub_f32 v{nm}, 0, v{nm}")
    else:
        lab = f"{ty}_{T}"
        f([f"v_cmp_gt_f32 vcc, v{t0}, v{th}", f"s_cbranch_vccnz L_rare{lab}", f"L_ret{lab}:"], 4)
        R = [f"L_rare{lab}:"] + xmax(t0, t1)
        R += [f"v_mul_f32 v{t0}, s{sC}, v{t0}", f"v_max_f32 v{t0}, v{t0}, -v{nm}",
              f"v_sub_f32 v{t1}, -v{nm}, v{t0}", f"v_exp_f32 v{t1}, v{t1}",
              f"v_sub_f32 v{nm}, 0, v{t0}", f"v_mov_b32 v{th}, s{sTH}", f"v_fma_f32 v{th}, v{t0}, s{sIC}, v{th}"]
        R += [f"v_mul_f32 v{64 * T + i}, v{64 * T + i}, v{t1}" for i in range(64)]
        for i in range(4):
            R += [f"v_accvgpr_read_b32 v{t0}, a{LF + 4 * T + i}", f"v_mul_f32 v{t0}, v{t0}, v{t1}", f"v_accvgpr_write_b32 a{LF + 4 * T + i}, v{t0}"]
        R += [f"s_branch L_ret{lab}"]
        rare_blocks.append(R)
    for i in range(8): f(f"v_fma_f32 v{s+i}, v{s+i}, s{sC}, v{nm}")
    for i in range(8): f(f"v_exp_f32 v{s+i}, v{s+i}", 8)
    for i in range(4): f(f"v_cvt_pk_bf16_f32 v{p+i}, v{s+2*i}, v{s+2*i+1}")
    return F

def step(NTl, ty, lab, first, vmn, dma, tail_salu, dma_a=(), sp=None):
    M = []
    for T in range(NTl):
        for t in range(8):
            for u in range(2):
                d = SR + 8 * T + 4 * u
                M.append(dict(x=f"{MF} {vr(d)}, {ar(KF + 4 * (2 * t + u))}, {ar(QF + 32 * T + 4 * t)}, {'0' if t == 0 else vr(d)}"))
    nA = len(M)
    for T in range(NTl):
        for dt in range(16):
            d = 64 * T + 4 * dt
            M.append(dict(x=f"{MF} {vr(d)}, {ar(VF + 4 * dt)}, {vr(PR + 4 * T)}, {'0' if first else vr(d)}", needs=f"sm{T}"))
        d = LF + 4 * T
        M.append(dict(x=f"{MF} {ar(d)}, {ar(ONES)}, {vr(PR + 4 * T)}, {'0' if first else ar(d)}"))
    V = []
    for T in range(NTl): V += [(x, c, f"sm{T}", 16 * (T + 1) - 1) for x, c in softmax(T, lab, first)]
    R = list(vreads())
    KR = [f"v_add_u32 v{vKR}, s{sRD}, v{vKB}"] + kreads()
    D = list(dma); DA = list(dma_a)
    if sp is None: sp = P['dsp']
    X = [[f"v_add_u32 v{vVR}, s{sRD}, v{vVB}"], adv_slot_l(sRD)] + tail_salu
    pos = {}; cnt = [0]; lastpos = {}
    def em(x):
        for y in (x if isinstance(x, list) else [x]):
            e(y)
            if not y.endswith(':'): cnt[0] += 1
    def vready():
        if not V: return False
        aft = V[0][3]
        return aft in pos and cnt[0] - pos[aft] >= 8
    def popv():
        x, c, tag, aft = V.pop(0); em(x); lastpos[tag] = cnt[0]; return c
    def flush(tag):
        while any(t == tag for _, _, t, _ in V):
            aft = V[0][3]
            if cnt[0] - pos[aft] < 8:
                em(f"s_nop {8 - (cnt[0] - pos[aft]) - 1}"); cnt[0] += 8
            popv()
    nM = len(M)
    kstart = nM - P['kgap'] - 16 if ty == 0 else nM - 17
    em("s_waitcnt lgkmcnt(6)")
    nvr = 0; lastd = -99
    for i, m in enumerate(M):
        if i == 10: em(f"s_waitcnt lgkmcnt({min(nvr, 15)})")
        if i == nA:
            while R: em(R.pop(0))
            while DA: em(DA.pop(0))
            lastd = -99
            em(f"s_waitcnt vmcnt({vmn}) lgkmcnt(0)" if vmn is not None else "s_waitcnt lgkmcnt(0)"); em("s_barrier")
        if 'needs' in m:
            flush(m['needs'])
            d = cnt[0] - lastpos[m['needs']]
            if d < 2: em(f"s_nop {1 - d}"); cnt[0] += 1
        em(m['x']); pos[i] = cnt[0]
        budget = 8
        if i < nA and R:
            nr = 1 if (nA - (P['vend'] if ty == 0 else 13) - i) >= len(R) else 2
            for _ in range(nr):
                if R: em(R.pop(0)); nvr += 1; budget -= 4
        if i >= nA and D and i - lastd >= sp:
            em(D.pop(0)); lastd = i
        if i < nA and DA and i - lastd >= P['dspa']:
            em(DA.pop(0)); lastd = i
        if i >= max(nA, kstart) and KR and budget > 0:
            if KR[0].startswith('v_add'): em(KR.pop(0)); budget -= 4
            em(KR.pop(0)); budget -= 4
        while budget > 0 and vready() and (V[0][1] <= budget or budget == 8):
            budget -= popv()
        if budget > 0 and i >= nA and not KR and not D and X: em(X.pop(0))
    assert not V
    for g in D: em(g)
    while KR: em(KR.pop(0))
    for g in X: em(g)

def main_loop(ty):
    NTl = 3 if ty == 0 else 2
    cnt_ = lambda n: [[f"s_add_u32 s{sSTEP}, s{sSTEP}, 1"], [f"s_cmp_lt_u32 s{sSTEP}, {n}"]]
    if ty == 0:
        for t in range(8): e(f"ds_read_b128 {ar(QF + 64 + 4 * t)}, v{vSP} offset:{1024 * t}")
        for x in kreads(): e(x)
        step(3, 0, "0", True, 8, [], [])
        e("s_waitcnt vmcnt(0)")
        e(f"s_mov_b32 s{sSTEP}, 1")
        e("L_loop0:")
        step(3, 0, "0", False, None, [], cnt_(32))
        e("s_cbranch_scc1 L_loop0")
    else:
        for x in kreads(): e(x)
        for g in kv_groups():
            for y in g: e("s_nop 0" if y.startswith("s_waitcnt") else y)
        if P['win']:
            step(2, 1, "1", True, 18, kv_groups()[:5], [], sp=P['dspb'])
            e(f"s_mov_b32 s{sSTEP}, 1")
            e("L_loop1:")
            step(2, 1, "1", False, 20, kv_groups()[:5], cnt_(28), dma_a=kv_groups()[5:], sp=P['dspb'])
            e("s_cbranch_scc1 L_loop1")
            for g in kv_groups()[5:]:
                for y in g: e(y)
        else:
            step(2, 1, "1", True, 18, kv_groups(), [])
            e(f"s_mov_b32 s{sSTEP}, 1")
            e("L_loop1:")
            step(2, 1, "1", False, 20, kv_groups(), cnt_(28))
            e("s_cbranch_scc1 L_loop1")
        e("L_loop2:")
        step(2, 1, "2", False, 20, wo_groups(), cnt_(32))
        e("s_cbranch_scc1 L_loop2")

W1, W2, U0 = 234, 236, 246
AF = ['a160', 'a192', 'a224', 'v192']
def freg(base, off, n=4):
    return (vr if base[0] == 'v' else ar)(int(base[1:]) + off, n)
def send(T, pk, so):
    d = 192 + 2 * (T - 1)
    e(f"v_sub_f32 v{d}, 0, v{NM + 2 * T}"); e(f"v_accvgpr_read_b32 v{d+1}, a{LF + 4 * T}")
    for t in range(8):
        qconv(64 * T + 8 * t, pk + 4 * t)
        if t == 4: e(f"s_add_u32 s{sT0}, {so[0]}, 4096")
        e(f"buffer_store_dwordx4 {vr(pk + 4 * t)}, v{vT0}, {srd(sXO)}, {so[0] if t < 4 else f's{sT0}'} offen offset:{1024 * (t & 3)} sc1")
    e(f"buffer_store_dwordx2 {vr(d, 2)}, v{vT1}, {srd(sXO)}, {so[1]} offen sc1")
def xaddr():
    e(f"v_lshlrev_b32 v{vT0}, 4, v{vL}"); e(f"v_lshlrev_b32 v{vT1}, 3, v{vL}")
    e(f"s_lshl_b32 s{sA0}, s3, 13"); e(f"s_lshl_b32 s{sA1}, s3, 9"); e(f"s_add_u32 s{sA1}, s{sA1}, 40960")
    e(f"s_mov_b32 s{sA2}, 32768"); e(f"s_mov_b32 s{sA3}, {40960 + 2048}")
    e(f"v_add_u32 v{vSP}, {XSP}, v{vT0}"); e(f"v_add_u32 v{vW9}, {XSP + 16384}, v{vT1}")
def wo_reads(slot_v, base, extra=0):
    return [f"ds_read_b64_tr_b16 {freg(base, 4 * t + 2 * v, 2)}, v{slot_v} offset:{extra + v * HALF + 128 * t}" for t in range(8) for v in range(2)]
def spin(lab, load, cmp):
    e(f"s_mov_b32 s{sSTEP}, 0")
    e(f"{lab}:")
    e(load)
    e("s_waitcnt vmcnt(0)")
    e(cmp)
    e(f"s_add_u32 s{sSTEP}, s{sSTEP}, 1")
    e(f"s_cbranch_vccz {lab}_ok")
    e(f"s_sleep {P['slp']}")
    e(f"s_cmp_lt_u32 s{sSTEP}, 0x200000"); e(f"s_cbranch_scc1 {lab}")
    e(f"{lab}_ok:")
def weights(mc_own_neg, l_own, st):
    e(f"v_max_f32 v{U0}, v{st}, {mc_own_neg}")
    e(f"v_sub_f32 v{W1}, {mc_own_neg}, v{U0}"); e(f"v_sub_f32 v{W2}, v{st}, v{U0}")
    e(f"v_exp_f32 v{W1}, v{W1}"); e(f"v_exp_f32 v{W2}, v{W2}")
    e(f"v_mul_f32 v{U0}, v{l_own}, v{W1}"); e(f"v_fma_f32 v{U0}, v{st+1}, v{W2}, v{U0}")
    e(f"v_rcp_f32 v{U0}, v{U0}"); e("s_nop 0")
    e(f"v_mul_f32 v{W1}, v{W1}, v{U0}"); e(f"v_mul_f32 v{W2}, v{W2}, v{U0}")
    e(f"v_mov_b32 v{W1+1}, v{W1}"); e(f"v_mov_b32 v{W2+1}, v{W2}")
def merge_frag(o0, pk, ldsv, off):
    for j in range(4):
        y = pk + j; o = o0 + 2 * j; u = U0 + 2 * (j & 1)
        e(f"v_pk_mul_f32 {vr(o, 2)}, {vr(o, 2)}, {vr(W1, 2)}")
        e(f"v_lshlrev_b32 v{u}, 16, v{y}"); e(f"v_and_b32 v{u+1}, 0xffff0000, v{y}")
        e(f"v_pk_fma_f32 {vr(o, 2)}, {vr(u, 2)}, {vr(W2, 2)}, {vr(o, 2)}")
    for j in range(4): e(f"v_cvt_pk_bf16_f32 v{pk + j}, v{o0 + 2 * j}, v{o0 + 2 * j + 1}")
    e(f"ds_write_b128 v{ldsv}, {vr(pk)} offset:{off}")

main_loop(0)
stamp(0, 3)
xaddr()
send(1, 64, (f"s{sA0}", f"s{sA1}"))
send(2, 96, (f"s{sA2}", f"s{sA3}"))
for i in range(16): e(f"ds_write_b128 v{vSP}, {vr(128 + 4 * i)} offset:{1024 * i}")
e(f"ds_write_b64 v{vW9}, {vr(194, 2)}")
e("s_branch L_tail")
e("L_type1:")
main_loop(1)
xaddr()
send(1, 64, (f"s{sA0}", f"s{sA1}"))
e("L_tail:")
e(f"s_mul_i32 s{sWC}, s{sHALF}, {4 * 128}"); e(f"s_sub_u32 s{sWC}, {4 * 128}, s{sWC}")
e(f"s_lshl_b32 s{sEV}, s{sB}, 5"); e("s_cmp_eq_u32 s3, 1"); e(f"s_cselect_b32 s{sT0}, s{sEV}, 0x10000")
e(f"v_and_b32 v{vXD}, 7, v{vL}"); e(f"v_lshlrev_b32 v{vXD}, 2, v{vXD}")
e(f"buffer_load_dword v{vDW}, v{vXD}, {srd(sDB)}, s{sT0} offen sc1")
e(f"v_accvgpr_read_b32 v229, a{LF}")
e(f"s_lshl_b32 s{sA4}, s3, 5"); e(f"v_add_u32 v{vWB}, s{sA4}, v{vWB}")
e(f"v_add_u32 v{vWC}, {2 * SLOT}, v{vWB}")
e(f"v_mov_b32 v{vTP}, 1")
stamp(3)
e("s_waitcnt vmcnt(0) lgkmcnt(0)")
e(f"buffer_store_dword v{vTP}, v{vF0}, {srd(sXO)}, s{sFL} offen sc1")
e("s_barrier")
stamp(3)
e(f"s_lshl_b32 s{sT0}, s3, 12"); e(f"v_add_u32 v{vSP}, s{sT0}, v{vSP}")
for i in range(4): e(f"ds_read_b128 {vr(96 + 4 * i)}, v{vSP} offset:{1024 * i}")
e(f"ds_read_b64 {vr(120, 2)}, v{vW9}")
for c in range(4):
    for x in wo_reads(vWB if c < 2 else vWC, AF[c], SLOT * (c & 1)): e(x)
e(f"v_add_u32 v{vSP}, {OAREA}, v{vT0}"); e(f"v_add_u32 v{vKB}, s{sA0}, v{vSP}")
e(f"s_lshl_b32 s{sT0}, s3, 11"); e(f"s_add_u32 s{sA2}, s{sA2}, s{sT0}"); e(f"v_add_u32 v{vW9}, s{sA2}, v{vSP}")
e(f"v_mov_b32 v{vVB}, {FLO}"); e(f"v_mov_b32 v{vTP}, s{sFL}"); e(f"v_cmp_eq_u32 vcc, 0, v{vL}")
e(f"s_mov_b32 s{sT1}, 0x01010101")
e("s_nop 0")
e(f"v_cndmask_b32 v{vVB}, v{vVB}, v{vTP}, vcc")
e("s_cmp_lg_u32 s3, 1"); e("s_cbranch_scc1 L_dpoll_ok")
e(f"v_cmp_ne_u32 vcc, s{sT1}, v{vDW}"); e("s_cbranch_vccz L_dpoll_ok")
spin("L_dpoll", f"buffer_load_dword v{vDW}, v{vXD}, {srd(sDB)}, s{sEV} offen sc1", f"v_cmp_ne_u32 vcc, s{sT1}, v{vDW}")
e("s_waitcnt lgkmcnt(0)"); e("s_barrier")
stamp(4)
spin("L_fpoll", f"buffer_load_dword v{vTP}, v{vVB}, {srd(sXI)}, 0 offen sc1", f"v_cmp_eq_u32 vcc, 0, v{vTP}")
stamp(3, 4)
e(f"buffer_load_dwordx2 {vr(224, 2)}, v{vT1}, {srd(sXI)}, s{sA1} offen sc1")
for t in range(8):
    if t == 4: e(f"s_add_u32 s{sT0}, s{sA0}, 4096")
    e(f"buffer_load_dwordx4 {vr(64 + 4 * t)}, v{vT0}, {srd(sXI)}, {f's{sA0}' if t < 4 else f's{sT0}'} offen offset:{1024 * (t & 3)} sc1")
e(f"buffer_load_dwordx2 {vr(226, 2)}, v{vT1}, {srd(sXI)}, s{sA3} offen sc1")
for i in range(2): e(f"buffer_load_dwordx4 {vr(112 + 4 * i)}, v{vT0}, {srd(sXI)}, s{sA2} offen offset:{1024 * i} sc1")
e(f"s_mul_i32 s{sA0}, s{sHALF}, {56 * 1024}"); e(f"s_mul_i32 s{sA1}, s3, {14 * 1024}"); e(f"s_add_u32 s{sA0}, s{sA0}, s{sA1}")
e(f"s_lshl_b32 s{sA2}, s3, 12"); e(f"s_add_u32 s{sA2}, s{sA2}, {112 * 1024}")
e(f"s_cmp_eq_u32 s{sHALF}, 0"); e(f"s_cselect_b32 s{sA2}, s{sA2}, {OOB}")
e("s_waitcnt vmcnt(11)")
stamp(4)
weights(f"-v{NM}", 229, 224)
for t in range(8):
    e(f"s_waitcnt vmcnt({10 - t})")
    merge_frag(8 * t, 64 + 4 * t, vKB, 1024 * t)
e("s_waitcnt vmcnt(0)")
weights("v120", 121, 226)
for i in range(2): merge_frag(96 + 8 * i, 112 + 4 * i, vW9, 1024 * i)
stamp(3, 4)
YA, YD = 0, 40
e("s_waitcnt lgkmcnt(0)"); e("s_barrier")
stamp(4)
def bread(t): return [f"ds_read_b128 {ar(32 * X + 4 * t)}, v{vSP} offset:{8192 * X + 1024 * t}" for X in range(5)]
for x in bread(0) + bread(1): e(x)
vm.q = []
fill = []
dmaq = []
AFc = AF + ['a160', 'a192', 'a224']
def popfill():
    f = fill.pop(0)
    if f[0] > len(A): e("s_nop 7")
    eg(f[1])
for c in range(7):
    if c < 3: dmaq += dma_wo8(4 + c)
    if c in (3, 4, 5):
        assert not dmaq
        e(f"s_waitcnt vmcnt({vm.wait({f'o{c+1}'})})"); e("s_barrier")
        if c == 3: stamp(4)
        rd = wo_reads(vWB if c < 5 else vWC, AFc[c + 1], SLOT if c == 4 else 0)
        fill[:] = [(0, ([x], None)) for x in rd[:8]] + fill + [(0, ([x], None)) for x in rd[8:]]
    k = 0
    for t in range(8):
        nb = []
        if c == 0:
            e(f"s_waitcnt lgkmcnt({5 if t < 7 else 0})")
            nb = bread(t + 2) if t + 2 < 8 else []
        if c >= 4 and t == 0:
            need = I(f"{MF} v[0:3], {freg(AFc[c], 0, 32)}, v[0:3], 0", 0).uses
            assert not any(I(y, 0).defs & need for f in fill for y in f[1][0])
        for X in range(5):
            acc = vr(YA + 20 * (c & 1) + 4 * X)
            x = f"{MF} {acc}, {freg(AFc[c], 4 * t)}, {ar(32 * X + 4 * t)}, {'0' if t == 0 else acc}"
            dd = I(x, 0).defs
            while any(I(y, 0).uses & dd for f in fill for y in f[1][0]): popfill()
            e(x); k += 1
            if nb: e(nb.pop(0))
            if dmaq and k % 5 == 2: eg(dmaq.pop(0))
            elif fill and fill[0][0] <= len(A) and c > 0: popfill()
    if c >= 3 and c < 6: e("s_waitcnt lgkmcnt(0)")
    at = len(A) + 9
    for j in range(2):
        src = YA + 20 * (c & 1) + 8 * j; dst = YD + 4 * (2 * (c & 1) + j)
        cv = cvt4(src, dst)
        fill += [(at, (cv[0:2], None)), (at, (cv[2:4], None)),
                 (at, ([f"s_add_u32 s{sT1}, s{sA0}, {1024 * (2 * c + j)}", f"buffer_store_dwordx4 {vr(dst)}, v{vT0}, {srd(sY)}, s{sT1} offen sc1"], "y"))]
    src = YA + 20 * (c & 1) + 16; dst = YD + 16 + 2 * (c & 1)
    fill.append((at, ([f"v_cvt_pk_bf16_f32 v{dst}, v{src}, v{src+1}", f"v_cvt_pk_bf16_f32 v{dst+1}, v{src+2}, v{src+3}"], None)))
    if (c & 1) or c == 6:
        fill.append((at, ([f"buffer_store_dwordx4 {vr(YD + 16)}, v{vT0}, {srd(sY)}, s{sA2} offen offset:{1024 * (c >> 1)} sc1"], "y")))
while fill: popfill()
stamp(0, 3)
sPOS, sR, sWP, sO0, sO1 = sA0, sA1, sA2, sA3, sA4
e(f"s_and_b32 s{sPOS}, s{sPI}, 31"); e(f"s_lshl_b32 s{sPOS}, s{sPOS}, 2"); e(f"s_add_u32 s{sPOS}, s{sPOS}, s3")
e(f"s_cmp_ge_u32 s{sPOS}, 112"); e("s_cbranch_scc1 L_t8")
e(f"s_mul_hi_u32 s{sWP}, s{sPOS}, {(2**32 + 13) // 14}")
e(f"s_mul_i32 s{sT0}, s{sWP}, 14"); e(f"s_sub_u32 s{sT0}, s{sPOS}, s{sT0}")
e(f"s_lshr_b32 s{sR}, s{sWP}, 2"); e(f"s_and_b32 s{sWP}, s{sWP}, 3")
e(f"s_lshr_b32 s{sT1}, s{sT0}, 1"); e(f"s_mul_i32 s{sO0}, s{sR}, 3"); e(f"s_add_u32 s{sT1}, s{sT1}, s{sO0}")
e(f"s_cmp_ge_u32 s{sT1}, 7"); e(f"s_cselect_b32 s{sO0}, 7, 0"); e(f"s_sub_u32 s{sT1}, s{sT1}, s{sO0}")
e(f"s_lshl_b32 s{sT1}, s{sT1}, 2"); e(f"s_add_u32 s{sT1}, s{sT1}, s{sWP}"); e(f"s_lshl_b32 s{sT1}, s{sT1}, 5")
e(f"s_and_b32 s{sT0}, s{sT0}, 1"); e(f"s_lshl_b32 s{sO0}, s{sR}, 1"); e(f"s_add_u32 s{sT0}, s{sT0}, s{sO0}")
e(f"s_mul_i32 s{sO0}, s{sT0}, {32 * 896}"); e(f"s_add_u32 s{sO0}, s{sO0}, s{sT1}"); e(f"s_add_u32 s{sO1}, s{sO0}, {16 * 896}")
e("s_branch L_go")
e("L_t8:")
e(f"s_sub_u32 s{sT0}, s{sPOS}, 112"); e(f"s_mov_b32 s{sR}, 0")
e(f"s_lshr_b32 s{sWP}, s{sT0}, 2"); e(f"s_and_b32 s{sT0}, s{sT0}, 3")
e(f"s_lshl_b32 s{sO0}, s{sT0}, 3"); e(f"s_add_u32 s{sO0}, s{sO0}, s{sWP}"); e(f"s_lshl_b32 s{sO0}, s{sO0}, 5"); e(f"s_add_u32 s{sO0}, s{sO0}, {128 * 896}")
e(f"s_add_u32 s{sO1}, s{sO0}, 128")
e(f"s_cmp_eq_u32 s{sT0}, 3"); e(f"s_cselect_b32 s{sO1}, {OOB}, s{sO1}")
e("L_go:")
e(f"s_mul_i32 s{sT0}, s{sB}, {144 * 896}"); mksrd(sOUT, 58, 59, f"s{sT0}", 144 * 896)
e(f"s_lshl_b32 s{sT0}, s{sB}, 21"); e(f"s_lshl_b32 s{sT1}, s{sPOS}, 10"); e(f"s_add_u32 s{sT0}, s{sT0}, s{sT1}"); mksrd(sYI, 62, 63, f"s{sT0}", 15 * YSZ + 1024)
e(f"s_lshl_b32 s{sT0}, s{sB}, 21"); e(f"s_add_u32 s{sT0}, s{sT0}, {XOFF}"); mksrd(sXI, 62, 63, f"s{sT0}", 32 * 65536)
e(f"s_lshl_b32 s{sT0}, s{sR}, 16"); e(f"s_lshl_b32 s{sT1}, s{sWP}, 7"); e(f"s_add_u32 s{sEV}, s{sT0}, s{sT1}"); e(f"s_add_u32 s{sEV}, s{sEV}, {FLO}")
e(f"v_and_b32 v{vVB}, 15, v{vL}"); e(f"v_mul_u32_u24 v{vKB}, 896, v{vVB}"); e(f"v_lshlrev_b32 v{vVB}, 17, v{vVB}")
e(f"v_lshrrev_b32 v{vT1}, 4, v{vL}"); e(f"v_lshl_add_u32 v{vKB}, v{vT1}, 3, v{vKB}")
e(f"v_mov_b32 v{vTP}, 2")
e("s_waitcnt vmcnt(0)")
e(f"buffer_store_dword v{vTP}, v{vF0}, {srd(sXO)}, s{sFL} offen sc1")
stamp(0, 3)
spin("L_rpoll", f"buffer_load_dword v{vDW}, v{vVB}, {srd(sXI)}, s{sEV} offen sc1", f"v_cmp_ne_u32 vcc, 2, v{vDW}")
stamp(0)
for i in range(16):
    e(f"s_mov_b32 s{sT0}, {i * YSZ}")
    e(f"buffer_load_dwordx4 {vr(64 + 4 * i)}, v{vT0}, {srd(sYI)}, s{sT0} offen sc1")
AC = 0
for i in range(16):
    e(f"s_waitcnt vmcnt({15 - i})")
    for j in range(4):
        y = 64 + 4 * i + j
        if i == 0:
            e(f"v_lshlrev_b32 v{AC + 2 * j}, 16, v{y}"); e(f"v_and_b32 v{AC + 1 + 2 * j}, 0xffff0000, v{y}")
        else:
            u = 12 + 2 * (j & 1)
            e(f"v_lshlrev_b32 v{u}, 16, v{y}"); e(f"v_and_b32 v{u+1}, 0xffff0000, v{y}")
            e(f"v_pk_add_f32 {vr(AC + 2 * j, 2)}, {vr(AC + 2 * j, 2)}, {vr(u, 2)}")
for j in range(4): e(f"v_cvt_pk_bf16_f32 v{16 + j}, v{AC + 2 * j}, v{AC + 1 + 2 * j}")
e(f"buffer_store_dwordx2 v[16:17], v{vKB}, {srd(sOUT)}, s{sO0} offen")
e(f"buffer_store_dwordx2 v[18:19], v{vKB}, {srd(sOUT)}, s{sO1} offen")
if P['stamps']:
    e("s_waitcnt vmcnt(0)")
    stamp(0, 3, 4)
    e("s_waitcnt lgkmcnt(0)")
    e("s_cmp_lg_u32 s3, 0"); e("s_cbranch_scc1 L_done")
    e("s_lshl_b32 s86, s2, 6"); e(f"s_add_u32 s86, s86, {WS - 256 * 64}")
    e("s_add_u32 s92, s62, s86"); e("s_addc_u32 s93, s63, 0"); e("s_mov_b32 s94, 64"); e("s_mov_b32 s95, 0x20000")
    e(f"v_lshlrev_b32 v{vT0}, 6, v{vL}")
    for i in range(nstamp[0]):
        e(f"v_mov_b32 v0, s{64 + 2 * i}"); e(f"v_mov_b32 v1, s{65 + 2 * i}")
        e(f"buffer_store_dwordx2 v[0:1], v{vT0}, s[92:95], 0 offen offset:{8 * i}"); e("s_nop 1")
e("L_done:"); e("s_endpgm")
for R in rare_blocks:
    for x in R: e(x)
e("L_codeend:")

e('.section .rodata,"a"')
e(".p2align 6"); e(f".amdhsa_kernel {KN}")
e(f"  .amdhsa_next_free_vgpr 512"); e("  .amdhsa_next_free_sgpr 102"); e(f"  .amdhsa_accum_offset 256")
e("  .amdhsa_group_segment_fixed_size 0"); e("  .amdhsa_kernarg_size 64"); e("  .amdhsa_user_sgpr_count 2")
e("  .amdhsa_user_sgpr_kernarg_segment_ptr 1"); e("  .amdhsa_system_sgpr_workgroup_id_x 1"); e(".end_amdhsa_kernel")

text = "\n".join(A) + "\n"
if P['kvfix']: text = text.replace(" nt lds", " lds")
open(P['out'], "w").write(text)
hz = check(text)
for x in hz[:40]: print(x)
print(len(hz), "hazards;", len(A), "lines")
```

```python
import sys, struct, math
sys.path.insert(0, 'gen')
from hazard import check, I

P = dict(out='standalone__mha_block_cached__near_ridge.s', stamps=0, sg=0, sp=4, slp=2, kv0=4, rot=1, xmap=0, kvfix=0, trace=0, diag=-1, kgap=5, vend=4, dsp=2, win=10, dspa=5, dspb=6)
for a in sys.argv[1:]:
    k, v = a.split('='); P[k] = v if k == 'out' else int(v)

def f2h(x): return '0x%08x' % struct.unpack('<I', struct.pack('<f', x))[0]
KN = "standalone__mha_block_cached__near_ridge_kernel"
SLOT, PIECE, HALF = 33792, 1056, 16896
SPARE = 4 * SLOT
XSP = SPARE + 8192
LDS = XSP + 16 * PIECE
YSZ = 128 * 1024
XOFF = 128 * YSZ
FLO = 61440
OAREA = 3 * SLOT
WS = 536870912
CS = 0.0625 * math.log2(math.e)
THR = 8.0
OOB = 0x40000000

A = []
def e(s): A.append(s)
def vr(b, n=4): return f"v[{b}:{b+n-1}]"
def ar(b, n=4): return f"a[{b}:{b+n-1}]"
MF = "v_mfma_f32_16x16x32_bf16"

sK, sV, sWQ, sWO, sX, sY, sXO = 4, 8, 12, 16, 20, 24, 28
sXI, sOUT, sYI = 12, 4, 8
sC, sIC, sTH, sSTEP, sKVOFF, sFILL, sRD, sP0, sT0, sT1, sWO8, sWOOFF, sXA, sXB, sW8, sW4 = range(32, 48)
sH, sB, sHALF, sPI, sKW, sA0, sA1, sA2, sA3, sA4 = range(80, 90)
sDB = 92
sFL, sEV, sKX, sK8, sWC = 96, 97, 98, 99, 100
sE = 20
sE11, sS11, sO11 = sXA, sXB, sKW
def srd(b): return f"s[{b}:{b+3}]"
def mksrd(d, lo, hi, off, size):
    e(f"s_add_u32 s{d}, s{lo}, {off}"); e(f"s_addc_u32 s{d+1}, s{hi}, 0"); e(f"s_mov_b32 s{d+2}, {size}"); e(f"s_mov_b32 s{d+3}, 0x20000")
vL, vWB, vWC, vW9, vKB, vVB, vKR, vVR, vD8, vD10, vDW, vDO, vXD, vT0, vT1, vSP = range(255, 239, -1)
vF0, vTP = 239, 238
vXR0, vXR1, vX8B, vX8C, vX8D = 237, 236, 235, 234, 233

nstamp = [0]
def stampi(grp=0):
    if P['stamps'] and (grp == P['sg'] or nstamp[0] == 0) and nstamp[0] < (6 if P['trace'] else 8):
        i = nstamp[0]; nstamp[0] += 1
        return [f"{'s_memrealtime' if P['stamps'] == 1 else 's_memtime'} s[{64+2*i}:{65+2*i}]"]
    return []
def stamp(*grps):
    for g in (grps or (0,)):
        for x in stampi(g): e(x)

class VM:
    def __init__(s): s.q = []
    def issue(s, tag, n=1): s.q += [tag] * n
    def wait(s, tags):
        last = -1
        for i, t in enumerate(s.q):
            if t in tags: last = i
        return min(63, len(s.q) - 1 - last)
vm = VM()
def eg(g):
    for y in g[0]: e(y)
    if g[1]: vm.issue(g[1])

def wslot(tau): return (1 + (tau + 2) % 3) * SLOT
def adv7(s, unit):
    return [f"s_add_u32 s{s}, s{s}, {unit}", f"s_cmp_ge_u32 s{s}, {7 * unit}", f"s_cselect_b32 s{s}, 0, s{s}"]
def dma_w(tau):
    G = [([f"s_add_u32 m0, s{sW8}, {wslot(tau) + k * PIECE}", f"s_add_u32 s{sT0}, s{sKW}, {((k & 3) + 8 * (k >> 2)) * 8192}",
           f"buffer_load_dwordx4 v{vDW}, {srd(sWQ)}, s{sT0} offen lds"], f"t{tau}") for k in range(8)]
    G[-1] = (G[-1][0] + adv7(sKW, 64 * 8192), G[-1][1])
    return G
def dma_x(n):
    G = []
    for T in range(2):
        for pc in range(2):
            G.append(([f"s_add_u32 m0, s{sW4}, {(n & 1) * HALF + (2 * T + pc) * 1024}", f"s_add_u32 s{sT0}, s{[sXA, sXB][T]}, s{sKX}"]
                      + ([f"s_add_u32 s{sT0}, s{sT0}, {8 * 896}"] if pc else [])
                      + [f"buffer_load_dwordx4 v{vXD}, {srd(sX)}, s{sT0} offen lds"], f"x{n}"))
    G[-1] = (G[-1][0] + adv7(sKX, 128), G[-1][1])
    return G
def x_reads(n):
    return [f"ds_read_b128 {ar(56 * T + 8 * n + 4 * en)}, v{[vXR0, vXR1][en]} offset:{(n & 1) * HALF + 2048 * T}" for T in range(2) for en in range(2)]
def x8_reads(n):
    return [f"v_add_u32 v{vX8C}, s{sK8}, v{vX8B}"] + [f"ds_read_b128 {ar(112 + 8 * n + 4 * en)}, v{vX8C} offset:{64 * en}" for en in range(2)] + adv7(sK8, 128)
def dma_kv8(t):
    slot = (t % 4) * SLOT
    return [([f"s_add_u32 m0, s{sW4}, {slot + half * HALF + 32 * k}", f"s_mov_b32 s{sT0}, {t * 16384}",
              f"buffer_load_dwordx4 v{vD8}, {srd(s_)}, s{sT0} offen offset:{1024 * k} nt lds"], f"kv{t}")
            for half, s_ in ((0, sK), (1, sV)) for k in range(4)]
def dma_wo8(i):
    slot = (i % 4) * SLOT
    G = [([f"s_add_u32 m0, s{sW8}, {slot + k * PIECE}", f"s_add_u32 s{sT0}, s{sA4}, {k * 896}",
           f"buffer_load_dwordx4 v{vDO}, {srd(sWO)}, s{sT0} offen lds"], f"o{i}") for k in range(8)]
    G[0] = ([f"s_add_u32 s{sA4}, s{sWO8}, s{sWC}"] + adv7(sWC, 128) + G[0][0], G[0][1])
    return G
lab_n = [0]
def win(G):
    if not P['win']: return G
    out = []
    for g in G:
        g2 = []
        for x in g:
            if x == "s_nop 0": continue
            if x.startswith("buffer_load"): g2.append(f"s_waitcnt vmcnt({P['win'] - 1})")
            g2.append(x)
        out.append(g2)
    return out
def kv_groups():
    G = []
    for half, s_ in ((0, sK), (1, sV)):
        for k in range(5):
            if k < 4:
                g = [f"s_add_u32 m0, s{sT1}, {half * HALF + 32 * k}", "s_nop 0",
                     f"buffer_load_dwordx4 v{vD10}, {srd(s_)}, s{sKVOFF} offen offset:{1024 * k} nt lds"]
            else:
                g = [f"s_add_u32 m0, s{sT1}, {half * HALF + 4 * PIECE}", f"s_add_u32 s{sT0}, s{sKVOFF}, 4096",
                     f"buffer_load_dwordx4 v{vD10}, {srd(s_)}, s{sT0} offen nt lds"]
            G.append(g)
    G[0] = [f"s_add_u32 s{sT1}, s{sFILL}, s{sP0}"] + G[0]
    lab_n[0] += 1
    G.append(["s_cmp_eq_u32 s3, 3", f"s_cbranch_scc1 L_sk{lab_n[0]}", f"s_add_u32 m0, s{sFILL}, s{sE11}", f"s_add_u32 s{sT0}, s{sKVOFF}, s{sS11}",
              f"buffer_load_dwordx4 v{vD10}, {srd(sE)}, s{sT0} offen nt lds", f"L_sk{lab_n[0]}:"])
    G.append(([f"s_add_u32 s{sKVOFF}, s{sKVOFF}, 16384"] if not P['kvfix'] else []) + adv_slot_l(sFILL))
    return win(G)
def wo_groups():
    G = []
    for half in (0, 1):
        for k in range(5):
            G.append([f"s_add_u32 m0, s{sT1}, {half * HALF + k * PIECE}", f"s_add_u32 s{sT0}, s{sA4}, {(16 * half + k) * 896}",
                      f"buffer_load_dwordx4 v{vDO}, {srd(sWO)}, s{sT0} offen lds"])
    G[0] = [f"s_add_u32 s{sT1}, s{sFILL}, s{sP0}", f"s_add_u32 s{sA4}, s{sWOOFF}, s{sWC}"] + G[0]
    lab_n[0] += 1
    G.append(["s_cmp_eq_u32 s3, 3", f"s_cbranch_scc1 L_sk{lab_n[0]}", f"s_add_u32 m0, s{sFILL}, s{sE11}", f"s_add_u32 s{sT0}, s{sWC}, s{sO11}",
              f"buffer_load_dwordx4 v{vDO}, {srd(sWO)}, s{sT0} offen lds", f"L_sk{lab_n[0]}:"])
    G.append(adv7(sWC, 128) + adv_slot_l(sFILL))
    return win(G)
def adv_slot_l(s):
    return [f"s_add_u32 s{s}, s{s}, {SLOT}", f"s_cmp_ge_u32 s{s}, {4 * SLOT}", f"s_cselect_b32 s{s}, 0, s{s}"]
def adv_slot(s):
    e(f"s_add_u32 s{s}, s{s}, {SLOT}"); e(f"s_cmp_ge_u32 s{s}, {4 * SLOT}"); e(f"s_cselect_b32 s{s}, 0, s{s}")

def stream_phase(frags, boundary, FB=192, NB=16, LA=12, GAP=4, MINB=6):
    n = len(frags)
    r = 0; lds_after = {}; nds = 0
    pend = []
    cur_tile = None; last_read_m = -10**9; rq = []
    done = [0]; nmf = [0]
    def eds(x):
        nonlocal nds
        e(x)
        if x.startswith('ds_'): nds += 1
    def epend():
        g, need = pend.pop(0)
        if need > done[0]:
            c = min(nds - need, 15); e(f"s_waitcnt lgkmcnt({c})"); done[0] = nds - c
        eg(g)
    def hook(h):
        while pend: epend()
        pre, nxt = h()
        if any('lgkmcnt(0)' in x for x in pre): done[0] = nds
        for x in pre: eds(x)
        pend.extend((g, nds if dep else 0) for g, dep in nxt)
        nmf[0] = -2
    def try_reads(m, budget):
        nonlocal r, cur_tile, last_read_m, rq
        did = 0
        while budget > 0:
            if not rq:
                if r >= n or r > m + LA or r - NB >= m: return did
                f = frags[r]
                if f['tile'] != cur_tile:
                    if r > 0 and m < min(last_read_m + GAP, r): return did
                    hook(lambda: boundary(f['tile']))
                    cur_tile = f['tile']
                rq = list(f['reads'](FB + 4 * (r % NB)))
            eds(rq.pop(0)); budget -= 1; did += 1
            if not rq:
                lds_after[r] = nds; last_read_m = m; r += 1
        return did
    try_reads(0, 2 * LA)
    for m in range(n):
        while r <= m: try_reads(m, 2)
        if 'mid' in frags[m] and not rq: hook(frags[m]['mid'])
        assert not ('mid' in frags[m] and rq)
        if lds_after[m] > done[0]:
            cnt = min(nds - lds_after[m], 15)
            e(f"s_waitcnt lgkmcnt({cnt})"); done[0] = nds - cnt
        for x in frags[m]['mf'](FB + 4 * (m % NB)):
            e(x)
            nmf[0] += 1
            if pend and (r - m) >= MINB and nmf[0] >= P['sp']:
                epend(); nmf[0] = 0
            else:
                try_reads(m, 2)
    while pend: epend()

e("; Kernarg: x, k_cache, v_cache, wq, wo, out, debug, ws (8-byte pointers)")
e(f"; @launch grid=(256,1,1) block=(256,1,1) lds={LDS}")
e('.amdgcn_target "amdgcn-amd-amdhsa--gfx950"')
e(".text"); e(f".globl {KN}"); e(".p2align 8"); e(f".type {KN},@function"); e(f"{KN}:")
e("s_cmp_ge_u32 s2, 256"); e("s_cbranch_scc1 L_done")
stamp()
e("s_load_dwordx16 s[48:63], s[0:1], 0")
e(f"v_lshrrev_b32 v{vT0}, 6, v0")
e(f"v_and_b32 v{vL}, 63, v0")
e(f"v_readfirstlane_b32 s3, v{vT0}")
e("s_getpc_b64 s[90:91]")
e("L_pc0:")
e(f"s_lshr_b32 s{sA0}, s2, 3"); e(f"s_lshl_b32 s{sA0}, s{sA0}, 11")
e(f"v_and_b32 v1, 3, v0"); e(f"v_lshl_add_u32 v1, v{vT0}, 2, v1"); e(f"v_lshlrev_b32 v1, 7, v1"); e(f"v_add_u32 v1, s{sA0}, v1")
e(f"v_min_u32 v1, L_codeend-L_pc0-4, v1")
e(f"global_load_dword v2, v1, s[90:91]")
vm.issue("cp")
if P['xmap'] == 0:
    e(f"s_and_b32 s{sH}, s2, 7"); e(f"s_lshr_b32 s{sB}, s2, 3")
    e(f"s_and_b32 s{sHALF}, s{sB}, 1"); e(f"s_lshl_b32 s{sH}, s{sH}, 1"); e(f"s_add_u32 s{sH}, s{sH}, s{sHALF}")
    e(f"s_lshr_b32 s{sHALF}, s{sB}, 1"); e(f"s_and_b32 s{sHALF}, s{sHALF}, 1")
    e(f"s_and_b32 s{sKX}, s{sB}, 3"); e(f"s_lshl_b32 s{sKX}, s{sKX}, 1")
    e(f"s_lshr_b32 s{sB}, s{sB}, 2")
else:
    e(f"s_and_b32 s{sHALF}, s2, 1"); e(f"s_lshr_b32 s{sH}, s2, 1"); e(f"s_and_b32 s{sH}, s{sH}, 15"); e(f"s_lshr_b32 s{sB}, s2, 5")
    e(f"s_and_b32 s{sKX}, s2, 3"); e(f"s_lshl_b32 s{sKX}, s{sKX}, 1")
e(f"s_add_u32 s{sKX}, s{sKX}, s{sB}"); e(f"s_cmp_ge_u32 s{sKX}, 7"); e(f"s_cselect_b32 s{sA0}, 7, 0"); e(f"s_sub_u32 s{sKX}, s{sKX}, s{sA0}")
if not P['rot']: e(f"s_mov_b32 s{sKX}, 0")
e(f"s_lshl_b32 s{sKW}, s{sKX}, 19"); e(f"s_lshl_b32 s{sKX}, s{sKX}, 7"); e(f"s_mov_b32 s{sK8}, s{sKX}")
e(f"v_lshlrev_b32 v{vT1}, 4, v{vL}")
e(f"v_mov_b32 v{vSP}, {OOB}")
e(f"v_cmp_gt_u32 vcc, 56, v{vL}")
e(f"s_mul_i32 s{sW8}, s3, {8 * PIECE}"); e(f"s_mul_i32 s{sW4}, s3, {4 * PIECE}")
e(f"v_cndmask_b32 v{vX8D}, v{vSP}, v{vT1}, vcc")
e(f"v_lshrrev_b32 v3, 3, v{vL}"); e(f"v_mul_u32_u24 v{vXD}, 896, v3"); e("v_and_b32 v3, 6, v3"); e(f"v_and_b32 v4, 7, v{vL}")
e("v_xor_b32 v3, v3, v4"); e(f"v_lshl_add_u32 v{vXD}, v3, 4, v{vXD}")
e(f"v_lshrrev_b32 v3, 5, v{vL}"); e("v_lshlrev_b32 v3, 2, v3")
e(f"v_lshl_add_u32 v3, v{vT0}, 4, v3"); e(f"v_lshlrev_b32 v{vDW}, 13, v3")
e(f"v_and_b32 v3, 31, v{vL}"); e(f"v_lshl_add_u32 v{vDW}, v3, 4, v{vDW}")
e(f"s_mul_i32 s{sXA}, s3, {16 * 896}"); e(f"s_mul_i32 s{sA1}, s3, {4 * 896}")
e(f"s_mul_i32 s{sA0}, s{sHALF}, {64 * 896}"); e(f"s_add_u32 s{sXB}, s{sXA}, {64 * 896}")
e(f"s_add_u32 s{sXA}, s{sXA}, s{sA0}"); e(f"s_sub_u32 s{sXB}, s{sXB}, s{sA0}")
e(f"s_mul_i32 s{sA0}, s{sB}, {144 * 896}"); e(f"s_lshl_b32 s{sA2}, s{sH}, 9")
e("s_waitcnt lgkmcnt(0)")
mksrd(sX, 48, 49, f"s{sA0}", 144 * 896)
e(f"s_add_u32 s{sWQ}, s54, s{sA2}"); e(f"s_addc_u32 s{sWQ+1}, s55, 0"); e(f"s_sub_u32 s{sWQ+2}, {448 * 8192}, s{sA2}"); e(f"s_mov_b32 s{sWQ+3}, 0x20000")
for g in dma_x(0) + dma_w(0): eg(g)
for k in range(4):
    e(f"s_add_u32 m0, s{sW4}, {XSP + k * PIECE}")
    e(f"s_add_u32 s{sT0}, s{sA1}, {(128 + k) * 896}")
    e(f"buffer_load_dwordx4 v{vX8D}, {srd(sX)}, s{sT0} offen lds")
vm.issue("x8", 4)
e(f"s_lshl_b32 s{sPI}, s{sB}, 4"); e(f"s_add_u32 s{sPI}, s{sPI}, s{sH}")
e(f"s_lshl_b32 s{sPI}, s{sPI}, 1"); e(f"s_add_u32 s{sPI}, s{sPI}, s{sHALF}")
e(f"s_lshl_b32 s{sA0}, s{sPI}, 16"); e(f"s_add_u32 s{sA0}, s{sA0}, {XOFF}"); mksrd(sXO, 62, 63, f"s{sA0}", 65536)
e(f"s_lshl_b32 s{sFL}, s3, 7"); e(f"s_add_u32 s{sFL}, s{sFL}, {FLO}")
e(f"v_lshlrev_b32 v{vF0}, 16, v{vL}"); e("v_mov_b32 v4, 0")
e(f"buffer_store_dword v4, v{vF0}, {srd(sXO)}, s{sFL} offen sc1")
vm.issue("fl")
for g in dma_x(1) + dma_w(1): eg(g)
e(f"s_lshl_b32 s{sA0}, s{sPI}, 19")
mksrd(sK, 50, 51, f"s{sA0}", 1 << 19); mksrd(sV, 52, 53, f"s{sA0}", 1 << 19)
e(f"s_mul_i32 s{sA0}, s{sH}, {256 * 896}"); mksrd(sWO, 56, 57, f"s{sA0}", 256 * 896)
e(f"s_lshr_b32 s{sA0}, s{sPI}, 1"); e(f"s_lshl_b32 s{sA0}, s{sA0}, 17"); mksrd(sY, 62, 63, f"s{sA0}", YSZ)
mksrd(sDB, 60, 61, 0, 256)
e(f"s_mov_b32 s{sC}, {f2h(CS)}"); e(f"s_mov_b32 s{sIC}, {f2h(1.0 / CS)}"); e(f"s_mov_b32 s{sTH}, {f2h(THR / CS)}")
e(f"s_mul_i32 s{sA0}, s3, 5"); e(f"s_sub_u32 s{sA0}, s{sA0}, 5"); e("s_cmp_eq_u32 s3, 0"); e(f"s_cselect_b32 s{sA0}, 0, s{sA0}")
e(f"s_mul_i32 s{sP0}, s{sA0}, {PIECE}"); e(f"s_mul_i32 s{sWOOFF}, s{sA0}, 896"); e(f"s_mul_i32 s{sWO8}, s3, {8 * 896}")
e(f"s_mul_i32 s{sWC}, s{sHALF}, {3 * 128}")
e(f"s_lshl_b32 s{sA0}, s{sA0}, 10")
e(f"v_add_u32 v{vD10}, s{sA0}, v{vT1}")
e(f"v_lshl_add_u32 v{vD8}, v{vT0}, 12, v{vT1}")
e(f"v_add_u32 v{vSP}, {SPARE}, v{vT1}")
e(f"v_lshrrev_b32 v{vT1}, 3, v{vL}"); e(f"v_mul_u32_u24 v{vDO}, {32 * 896}, v{vT1}")
e(f"v_and_b32 v{vT1}, 7, v{vL}"); e(f"v_lshl_add_u32 v{vDO}, v{vT1}, 4, v{vDO}")
e(f"v_lshrrev_b32 v{vT1}, 2, v{vL}"); e(f"v_mul_u32_u24 v{vWB}, {PIECE}, v{vT1}")
e(f"v_and_b32 v{vT1}, 3, v{vL}"); e(f"v_lshl_add_u32 v{vWB}, v{vT1}, 3, v{vWB}")
e(f"v_and_b32 v5, 15, v{vL}"); e(f"v_lshrrev_b32 v6, 4, v{vL}"); e("v_and_b32 v7, 6, v5"); e("v_xor_b32 v7, v7, v6")
e(f"v_lshlrev_b32 v{vXR0}, 7, v5"); e(f"v_lshl_add_u32 v{vXR0}, v7, 4, v{vXR0}"); e(f"v_add_u32 v{vXR0}, s{sW4}, v{vXR0}")
e(f"v_xor_b32 v{vXR1}, 64, v{vXR0}")
e(f"v_mul_u32_u24 v{vX8B}, {PIECE}, v5"); e(f"v_lshl_add_u32 v{vX8B}, v6, 4, v{vX8B}"); e(f"v_add_u32 v{vX8B}, {XSP}, v{vX8B}")
e(f"v_and_b32 v{vT1}, 7, v{vL}"); e(f"v_mul_u32_u24 v{vKB}, {PIECE}, v{vT1}")
e(f"v_lshl_add_u32 v{vKB}, v6, 4, v{vKB}")
e(f"v_bfe_u32 v{vT1}, v{vL}, 3, 1"); e(f"v_lshl_add_u32 v{vKB}, v{vT1}, 9, v{vKB}")
e(f"v_bfe_u32 v{vT1}, v{vL}, 2, 3"); e(f"v_mul_u32_u24 v{vVB}, {PIECE}, v{vT1}")
e(f"v_lshrrev_b32 v{vT1}, 5, v{vL}"); e(f"v_lshl_add_u32 v{vVB}, v{vT1}, 9, v{vVB}")
e(f"v_and_b32 v{vT1}, 3, v{vL}"); e(f"v_lshl_add_u32 v{vVB}, v{vT1}, 3, v{vVB}")
e(f"s_lshl_b32 s{sA1}, s3, 7")
e(f"s_and_b32 s{sT0}, s{sPI}, 3"); e(f"s_lshl_b32 s{sT0}, s{sT0}, 3"); e(f"s_lshl_b32 s{sT0}, 1, s{sT0}")
e(f"v_mov_b32 v{vTP}, s{sT0}"); e(f"s_and_b32 s{sEV}, s{sPI}, 0xfc")
e("s_cmp_eq_u32 s3, 0"); e(f"s_cselect_b32 s{sEV}, s{sEV}, 0x10000")

def dep(G, d): return [(g, d) for g in G]
def q_mid(tau):
    n = 2 * tau + 1
    pre = [f"s_waitcnt vmcnt({vm.wait({f'x{n}'})})"] + x_reads(n)
    return pre, (dep(dma_x(n + 2), 1) if n + 2 < 7 else [])
def q_boundary(tau):
    tags = {f't{tau}'}
    n = 2 * tau
    if n < 7: tags.add(f'x{n}')
    if tau == 0: tags |= {'x8'}
    if tau == 1: tags |= {'fl'}
    pre = [f"s_waitcnt vmcnt({vm.wait(tags)}) lgkmcnt(0)", "s_barrier",
           f"v_add_u32 v{vWC}, {wslot(tau)}, v{vWB}", f"v_add_u32 v{vW9}, s{sA1}, v{vWC}"]
    if tau == P['kv0']: pre += stampi()
    pre += stampi(1)
    if n < 7: pre += x_reads(n)
    pre += x8_reads(tau)
    post = []
    if n + 2 < 7: post += dep(dma_x(n + 2), 1)
    if tau + 2 < 7: post += dep(dma_w(tau + 2), 0)
    if tau == 1: post += [(([f"buffer_atomic_or v{vTP}, v{vF0}, {srd(sDB)}, s{sEV} offen sc1"], "da"), 0)]
    if tau == P['kv0']: post += dep(dma_kv8(0), 1)
    if tau >= 5: post += dep(dma_kv8(tau - 4), 0)
    return pre, post
frags = []
for s in range(14):
    tau, en = s >> 1, s & 1
    for T in range(20):
        own = T < 16
        col = T if own else T - 16
        base = vWC if own else vW9
        def reads(fb, base=base, en=en, col=col):
            return [f"ds_read_b64_tr_b16 {ar(fb + 2 * v, 2)}, v{base} offset:{en * HALF + v * 512 + 32 * col}" for v in range(2)]
        def mf(fb, own=own, col=col, s=s):
            tl = [(0, 4 * col), (1, 64 + 4 * col)] if own else [(2, 128 + 4 * col)]
            return [f"{MF} {vr(acc)}, {ar(fb)}, {ar(56 * X + 4 * s)}, {'0' if s == 0 else vr(acc)}" for X, acc in tl]
        f = dict(tile=tau, reads=reads, mf=mf)
        if en == 0 and T == 14 and tau < 3: f['mid'] = (lambda tau=tau: q_mid(tau))
        frags.append(f)
stream_phase(frags, q_boundary)
stamp()
e("s_nop 7")
def cvt4(src, dst):
    return [f"v_cvt_pk_bf16_f32 v{dst+i}, v{src+2*i}, v{src+2*i+1}" for i in range(4)]
def qconv(src, dst):
    for x in cvt4(src, dst): e(x)
def qswap(d):
    e(f"v_permlane32_swap_b32 v{d}, v{d+2}"); e(f"v_permlane32_swap_b32 v{d+1}, v{d+3}")
def qswap2(d):
    e(f"v_permlane16_swap_b32 v{d}, v{d+2}"); e(f"v_permlane16_swap_b32 v{d+1}, v{d+3}")
qconv(128, 144); qconv(136, 148)
e(f"s_lshl_b32 s{sA0}, s3, 11")
e(f"v_add_u32 v{vT1}, s{sA0}, v{vSP}")
qswap(144); qswap(148); qswap2(144); qswap2(148)
e(f"ds_write_b128 v{vT1}, {vr(144)}"); e(f"ds_write_b128 v{vT1}, {vr(148)} offset:1024")
for t in range(16): qconv(8 * t, 152 + 4 * t)
for t in range(16): qswap(152 + 4 * t)
for t in range(16): qswap2(152 + 4 * t)
for i in range(64): e(f"v_accvgpr_write_b32 a{i}, v{152 + i}")
e(f"v_mov_b32 v{vT1}, 0x3f803f80")
for i in range(4): e(f"v_accvgpr_write_b32 a{236 + i}, v{vT1}")
e(f"v_mov_b32 v{vKR}, v{vKB}"); e(f"v_mov_b32 v{vVR}, v{vVB}")
e(f"s_mov_b32 s{sKVOFF}, {3 * 16384}"); e(f"s_mov_b32 s{sFILL}, {3 * SLOT}"); e(f"s_mov_b32 s{sRD}, {SLOT}")
e(f"s_xor_b32 s{sA0}, s{sPI}, 1"); e(f"s_lshl_b32 s{sA0}, s{sA0}, 16"); e(f"s_add_u32 s{sA0}, s{sA0}, {XOFF}"); mksrd(sXI, 62, 63, f"s{sA0}", 65536)
e("s_cmp_eq_u32 s3, 1")
e(f"s_cselect_b32 s{sE}, s{sK}, s{sV}"); e(f"s_cselect_b32 s{sE+1}, s{sK+1}, s{sV+1}"); e(f"s_mov_b32 s{sE+2}, {1 << 19}"); e(f"s_mov_b32 s{sE+3}, 0x20000")
e(f"s_cselect_b32 s{sE11}, {15 * PIECE}, {HALF + 15 * PIECE}".replace(f", {HALF + 15 * PIECE}", f", s{sT0}").replace("s_cselect", f"s_mov_b32 s{sT0}, {HALF + 15 * PIECE}\ns_cselect"))
e(f"s_mov_b32 s{sT0}, {10 * 1024}"); e(f"s_cselect_b32 s{sS11}, {15 * 1024}, s{sT0}")
e(f"s_mov_b32 s{sT0}, {31 * 896}"); e(f"s_cselect_b32 s{sO11}, {15 * 896}, s{sT0}")
e(f"s_waitcnt vmcnt({vm.wait({'kv0'})}) lgkmcnt(0)"); e("s_barrier")
assert vm.wait({'kv1'}) == 8
e("s_cmp_lg_u32 s3, 0"); e("s_cbranch_scc1 L_type1")

QF, KF, VF, LF, ONES = 0, 96, 160, 224, 236
SR, PR, NM, TMP = 192, 216, 228, 234
rare_blocks = []
def kreads():
    return [f"ds_read_b128 {ar(KF + 4 * (2 * t + u))}, v{vKR} offset:{u * 8 * PIECE + 64 * t}" for t in range(8) for u in range(2)]
def vreads():
    return [f"ds_read_b64_tr_b16 {ar(VF + 4 * dt + 2 * u, 2)}, v{vVR} offset:{HALF + u * 8 * PIECE + 32 * dt}" for dt in range(16) for u in range(2)]
def xmax(t0, t1):
    return [f"v_mov_b32 v{t1}, v{t0}", "s_nop 1", f"v_permlane32_swap_b32 v{t0}, v{t1}", "s_nop 1", f"v_max_f32 v{t0}, v{t0}, v{t1}",
            f"v_mov_b32 v{t1}, v{t0}", "s_nop 1", f"v_permlane16_swap_b32 v{t0}, v{t1}", "s_nop 1", f"v_max_f32 v{t0}, v{t0}, v{t1}"]
def softmax(T, ty, first):
    s = SR + 8 * T; p = PR + 4 * T; nm = NM + 2 * T; th = nm + 1; t0 = TMP + 2 * (T & 1); t1 = t0 + 1
    F = []
    def f(x, c=4): F.append((x, c))
    f(f"v_max3_f32 v{t0}, v{s}, v{s+1}, v{s+2}"); f(f"v_max3_f32 v{t1}, v{s+4}, v{s+5}, v{s+6}")
    f(f"v_max3_f32 v{t0}, v{t0}, v{s+3}, v{s+7}"); f(f"v_max_f32 v{t0}, v{t0}, v{t1}")
    if first:
        for x in xmax(t0, t1): f(x)
        f(f"v_mul_f32 v{nm}, s{sC}, v{t0}"); f(f"v_add_f32 v{th}, s{sTH}, v{t0}"); f(f"v_sub_f32 v{nm}, 0, v{nm}")
    else:
        lab = f"{ty}_{T}"
        f([f"v_cmp_gt_f32 vcc, v{t0}, v{th}", f"s_cbranch_vccnz L_rare{lab}", f"L_ret{lab}:"], 4)
        R = [f"L_rare{lab}:"] + xmax(t0, t1)
        R += [f"v_mul_f32 v{t0}, s{sC}, v{t0}", f"v_max_f32 v{t0}, v{t0}, -v{nm}",
              f"v_sub_f32 v{t1}, -v{nm}, v{t0}", f"v_exp_f32 v{t1}, v{t1}",
              f"v_sub_f32 v{nm}, 0, v{t0}", f"v_mov_b32 v{th}, s{sTH}", f"v_fma_f32 v{th}, v{t0}, s{sIC}, v{th}"]
        R += [f"v_mul_f32 v{64 * T + i}, v{64 * T + i}, v{t1}" for i in range(64)]
        for i in range(4):
            R += [f"v_accvgpr_read_b32 v{t0}, a{LF + 4 * T + i}", f"v_mul_f32 v{t0}, v{t0}, v{t1}", f"v_accvgpr_write_b32 a{LF + 4 * T + i}, v{t0}"]
        R += [f"s_branch L_ret{lab}"]
        rare_blocks.append(R)
    for i in range(8): f(f"v_fma_f32 v{s+i}, v{s+i}, s{sC}, v{nm}")
    for i in range(8): f(f"v_exp_f32 v{s+i}, v{s+i}", 8)
    for i in range(4): f(f"v_cvt_pk_bf16_f32 v{p+i}, v{s+2*i}, v{s+2*i+1}")
    return F

def step(NTl, ty, lab, first, vmn, dma, tail_salu, dma_a=(), sp=None):
    M = []
    for T in range(NTl):
        for t in range(8):
            for u in range(2):
                d = SR + 8 * T + 4 * u
                M.append(dict(x=f"{MF} {vr(d)}, {ar(KF + 4 * (2 * t + u))}, {ar(QF + 32 * T + 4 * t)}, {'0' if t == 0 else vr(d)}"))
    nA = len(M)
    for T in range(NTl):
        for dt in range(16):
            d = 64 * T + 4 * dt
            M.append(dict(x=f"{MF} {vr(d)}, {ar(VF + 4 * dt)}, {vr(PR + 4 * T)}, {'0' if first else vr(d)}", needs=f"sm{T}"))
        d = LF + 4 * T
        M.append(dict(x=f"{MF} {ar(d)}, {ar(ONES)}, {vr(PR + 4 * T)}, {'0' if first else ar(d)}"))
    V = []
    for T in range(NTl): V += [(x, c, f"sm{T}", 16 * (T + 1) - 1) for x, c in softmax(T, lab, first)]
    R = list(vreads())
    KR = [f"v_add_u32 v{vKR}, s{sRD}, v{vKB}"] + kreads()
    D = list(dma); DA = list(dma_a)
    if sp is None: sp = P['dsp']
    X = [[f"v_add_u32 v{vVR}, s{sRD}, v{vVB}"], adv_slot_l(sRD)] + tail_salu
    pos = {}; cnt = [0]; lastpos = {}
    def em(x):
        for y in (x if isinstance(x, list) else [x]):
            e(y)
            if not y.endswith(':'): cnt[0] += 1
    def vready():
        if not V: return False
        aft = V[0][3]
        return aft in pos and cnt[0] - pos[aft] >= 8
    def popv():
        x, c, tag, aft = V.pop(0); em(x); lastpos[tag] = cnt[0]; return c
    def flush(tag):
        while any(t == tag for _, _, t, _ in V):
            aft = V[0][3]
            if cnt[0] - pos[aft] < 8:
                em(f"s_nop {8 - (cnt[0] - pos[aft]) - 1}"); cnt[0] += 8
            popv()
    nM = len(M)
    kstart = nM - P['kgap'] - 16 if ty == 0 else nM - 17
    em("s_waitcnt lgkmcnt(6)")
    if P['trace'] and ty == 0 and not first: em(["s_memrealtime s[76:77]", "s_memtime s[78:79]"])
    nvr = 0; lastd = -99
    for i, m in enumerate(M):
        if i == 10: em(f"s_waitcnt lgkmcnt({min(nvr, 15)})")
        if i == nA:
            while R: em(R.pop(0))
            while DA: em(DA.pop(0))
            lastd = -99
            em(f"s_waitcnt vmcnt({vmn}) lgkmcnt(0)" if vmn is not None else "s_waitcnt lgkmcnt(0)"); em("s_barrier")
        if i == nA and P['trace'] and ty == 0 and not first:
            em([f"s_mov_b32 m0, s{sSTEP}", "s_nop 0", "v_writelane_b32 v247, s76, m0", "v_writelane_b32 v246, s78, m0"])
        if 'needs' in m:
            flush(m['needs'])
            d = cnt[0] - lastpos[m['needs']]
            if d < 2: em(f"s_nop {1 - d}"); cnt[0] += 1
        em(m['x']); pos[i] = cnt[0]
        budget = 8
        if i < nA and R:
            nr = 1 if (nA - (P['vend'] if ty == 0 else 13) - i) >= len(R) else 2
            for _ in range(nr):
                if R: em(R.pop(0)); nvr += 1; budget -= 4
        if i >= nA and D and i - lastd >= sp:
            em(D.pop(0)); lastd = i
        if i < nA and DA and i - lastd >= P['dspa']:
            em(DA.pop(0)); lastd = i
        if i >= max(nA, kstart) and KR and budget > 0:
            if KR[0].startswith('v_add'): em(KR.pop(0)); budget -= 4
            em(KR.pop(0)); budget -= 4
        while budget > 0 and vready() and (V[0][1] <= budget or budget == 8):
            budget -= popv()
        if budget > 0 and i >= nA and not KR and not D and X: em(X.pop(0))
    assert not V
    for g in D: em(g)
    while KR: em(KR.pop(0))
    for g in X: em(g)

def main_loop(ty):
    NTl = 3 if ty == 0 else 2
    cnt_ = lambda n: [[f"s_add_u32 s{sSTEP}, s{sSTEP}, 1"], [f"s_cmp_lt_u32 s{sSTEP}, {n}"]]
    if ty == 0:
        for t in range(8): e(f"ds_read_b128 {ar(QF + 64 + 4 * t)}, v{vSP} offset:{1024 * t}")
        for x in kreads(): e(x)
        step(3, 0, "0", True, 8, [], [])
        e("s_waitcnt vmcnt(0)")
        e(f"s_mov_b32 s{sSTEP}, 1")
        e("L_loop0:")
        step(3, 0, "0", False, None, [], cnt_(32))
        e("s_cbranch_scc1 L_loop0")
    else:
        for x in kreads(): e(x)
        for g in kv_groups():
            for y in g: e("s_nop 0" if y.startswith("s_waitcnt") else y)
        if P['win']:
            step(2, 1, "1", True, 18, kv_groups()[:5], [], sp=P['dspb'])
            e(f"s_mov_b32 s{sSTEP}, 1")
            e("L_loop1:")
            step(2, 1, "1", False, 20, kv_groups()[:5], cnt_(28), dma_a=kv_groups()[5:], sp=P['dspb'])
            e("s_cbranch_scc1 L_loop1")
            for g in kv_groups()[5:]:
                for y in g: e(y)
        else:
            step(2, 1, "1", True, 18, kv_groups(), [])
            e(f"s_mov_b32 s{sSTEP}, 1")
            e("L_loop1:")
            step(2, 1, "1", False, 20, kv_groups(), cnt_(28))
            e("s_cbranch_scc1 L_loop1")
        e("L_loop2:")
        step(2, 1, "2", False, 20, wo_groups(), cnt_(32))
        e("s_cbranch_scc1 L_loop2")

W1, W2, U0 = 234, 236, 246
AF = ['a160', 'a192', 'a224', 'v192']
def freg(base, off, n=4):
    return (vr if base[0] == 'v' else ar)(int(base[1:]) + off, n)
def send(T, pk, so):
    d = 192 + 2 * (T - 1)
    e(f"v_sub_f32 v{d}, 0, v{NM + 2 * T}"); e(f"v_accvgpr_read_b32 v{d+1}, a{LF + 4 * T}")
    for t in range(8):
        qconv(64 * T + 8 * t, pk + 4 * t)
        if t == 4: e(f"s_add_u32 s{sT0}, {so[0]}, 4096")
        e(f"buffer_store_dwordx4 {vr(pk + 4 * t)}, v{vT0}, {srd(sXO)}, {so[0] if t < 4 else f's{sT0}'} offen offset:{1024 * (t & 3)} sc1")
    e(f"buffer_store_dwordx2 {vr(d, 2)}, v{vT1}, {srd(sXO)}, {so[1]} offen sc1")
def xaddr():
    e(f"v_lshlrev_b32 v{vT0}, 4, v{vL}"); e(f"v_lshlrev_b32 v{vT1}, 3, v{vL}")
    e(f"s_lshl_b32 s{sA0}, s3, 13"); e(f"s_lshl_b32 s{sA1}, s3, 9"); e(f"s_add_u32 s{sA1}, s{sA1}, 40960")
    e(f"s_mov_b32 s{sA2}, 32768"); e(f"s_mov_b32 s{sA3}, {40960 + 2048}")
    e(f"v_add_u32 v{vSP}, {XSP}, v{vT0}"); e(f"v_add_u32 v{vW9}, {XSP + 16384}, v{vT1}")
def wo_reads(slot_v, base, extra=0):
    return [f"ds_read_b64_tr_b16 {freg(base, 4 * t + 2 * v, 2)}, v{slot_v} offset:{extra + v * HALF + 128 * t}" for t in range(8) for v in range(2)]
def spin(lab, load, cmp):
    e(f"s_mov_b32 s{sSTEP}, 0")
    e(f"{lab}:")
    e(load)
    e("s_waitcnt vmcnt(0)")
    e(cmp)
    e(f"s_add_u32 s{sSTEP}, s{sSTEP}, 1")
    e(f"s_cbranch_vccz {lab}_ok")
    e(f"s_sleep {P['slp']}")
    e(f"s_cmp_lt_u32 s{sSTEP}, 0x200000"); e(f"s_cbranch_scc1 {lab}")
    e(f"{lab}_ok:")
def weights(mc_own_neg, l_own, st):
    e(f"v_max_f32 v{U0}, v{st}, {mc_own_neg}")
    e(f"v_sub_f32 v{W1}, {mc_own_neg}, v{U0}"); e(f"v_sub_f32 v{W2}, v{st}, v{U0}")
    e(f"v_exp_f32 v{W1}, v{W1}"); e(f"v_exp_f32 v{W2}, v{W2}")
    e(f"v_mul_f32 v{U0}, v{l_own}, v{W1}"); e(f"v_fma_f32 v{U0}, v{st+1}, v{W2}, v{U0}")
    e(f"v_rcp_f32 v{U0}, v{U0}"); e("s_nop 0")
    e(f"v_mul_f32 v{W1}, v{W1}, v{U0}"); e(f"v_mul_f32 v{W2}, v{W2}, v{U0}")
    e(f"v_mov_b32 v{W1+1}, v{W1}"); e(f"v_mov_b32 v{W2+1}, v{W2}")
def merge_frag(o0, pk, ldsv, off):
    for j in range(4):
        y = pk + j; o = o0 + 2 * j; u = U0 + 2 * (j & 1)
        e(f"v_pk_mul_f32 {vr(o, 2)}, {vr(o, 2)}, {vr(W1, 2)}")
        e(f"v_lshlrev_b32 v{u}, 16, v{y}"); e(f"v_and_b32 v{u+1}, 0xffff0000, v{y}")
        e(f"v_pk_fma_f32 {vr(o, 2)}, {vr(u, 2)}, {vr(W2, 2)}, {vr(o, 2)}")
    for j in range(4): e(f"v_cvt_pk_bf16_f32 v{pk + j}, v{o0 + 2 * j}, v{o0 + 2 * j + 1}")
    e(f"ds_write_b128 v{ldsv}, {vr(pk)} offset:{off}")

main_loop(0)
if P['trace']:
    e("s_lshl_b32 s86, s2, 9"); e(f"s_add_u32 s86, s86, {WS - 256 * 64 - 256 * 512}")
    e("s_add_u32 s76, s62, s86"); e("s_addc_u32 s77, s63, 0"); e("s_mov_b32 s78, 512"); e("s_mov_b32 s79, 0x20000")
    e(f"v_lshlrev_b32 v245, 2, v{vL}")
    e("buffer_store_dword v247, v245, s[76:79], 0 offen"); e("buffer_store_dword v246, v245, s[76:79], 0 offen offset:256")
stamp(0, 3)
xaddr()
send(1, 64, (f"s{sA0}", f"s{sA1}"))
send(2, 96, (f"s{sA2}", f"s{sA3}"))
for i in range(16): e(f"ds_write_b128 v{vSP}, {vr(128 + 4 * i)} offset:{1024 * i}")
e(f"ds_write_b64 v{vW9}, {vr(194, 2)}")
e("s_branch L_tail")
e("L_type1:")
main_loop(1)
xaddr()
send(1, 64, (f"s{sA0}", f"s{sA1}"))
e("L_tail:")
e(f"s_mul_i32 s{sWC}, s{sHALF}, {4 * 128}"); e(f"s_sub_u32 s{sWC}, {4 * 128}, s{sWC}")
e(f"s_lshl_b32 s{sEV}, s{sB}, 5"); e("s_cmp_eq_u32 s3, 1"); e(f"s_cselect_b32 s{sT0}, s{sEV}, 0x10000")
e(f"v_and_b32 v{vXD}, 7, v{vL}"); e(f"v_lshlrev_b32 v{vXD}, 2, v{vXD}")
e(f"buffer_load_dword v{vDW}, v{vXD}, {srd(sDB)}, s{sT0} offen sc1")
e(f"v_accvgpr_read_b32 v229, a{LF}")
e(f"s_lshl_b32 s{sA4}, s3, 5"); e(f"v_add_u32 v{vWB}, s{sA4}, v{vWB}")
e(f"v_add_u32 v{vWC}, {2 * SLOT}, v{vWB}")
e(f"v_mov_b32 v{vTP}, 1")
stamp(3)
e("s_waitcnt vmcnt(0) lgkmcnt(0)")
e(f"buffer_store_dword v{vTP}, v{vF0}, {srd(sXO)}, s{sFL} offen sc1")
e("s_barrier")
stamp(3)
e(f"s_lshl_b32 s{sT0}, s3, 12"); e(f"v_add_u32 v{vSP}, s{sT0}, v{vSP}")
for i in range(4): e(f"ds_read_b128 {vr(96 + 4 * i)}, v{vSP} offset:{1024 * i}")
e(f"ds_read_b64 {vr(120, 2)}, v{vW9}")
for c in range(4):
    for x in wo_reads(vWB if c < 2 else vWC, AF[c], SLOT * (c & 1)): e(x)
e(f"v_add_u32 v{vSP}, {OAREA}, v{vT0}"); e(f"v_add_u32 v{vKB}, s{sA0}, v{vSP}")
e(f"s_lshl_b32 s{sT0}, s3, 11"); e(f"s_add_u32 s{sA2}, s{sA2}, s{sT0}"); e(f"v_add_u32 v{vW9}, s{sA2}, v{vSP}")
e(f"v_mov_b32 v{vVB}, {FLO}"); e(f"v_mov_b32 v{vTP}, s{sFL}"); e(f"v_cmp_eq_u32 vcc, 0, v{vL}")
e(f"s_mov_b32 s{sT1}, 0x01010101")
e("s_nop 0")
e(f"v_cndmask_b32 v{vVB}, v{vVB}, v{vTP}, vcc")
e("s_cmp_lg_u32 s3, 1"); e("s_cbranch_scc1 L_dpoll_ok")
e(f"v_cmp_ne_u32 vcc, s{sT1}, v{vDW}"); e("s_cbranch_vccz L_dpoll_ok")
spin("L_dpoll", f"buffer_load_dword v{vDW}, v{vXD}, {srd(sDB)}, s{sEV} offen sc1", f"v_cmp_ne_u32 vcc, s{sT1}, v{vDW}")
e("s_waitcnt lgkmcnt(0)"); e("s_barrier")
stamp(4)
spin("L_fpoll", f"buffer_load_dword v{vTP}, v{vVB}, {srd(sXI)}, 0 offen sc1", f"v_cmp_eq_u32 vcc, 0, v{vTP}")
stamp(3, 4)
e(f"buffer_load_dwordx2 {vr(224, 2)}, v{vT1}, {srd(sXI)}, s{sA1} offen sc1")
for t in range(8):
    if t == 4: e(f"s_add_u32 s{sT0}, s{sA0}, 4096")
    e(f"buffer_load_dwordx4 {vr(64 + 4 * t)}, v{vT0}, {srd(sXI)}, {f's{sA0}' if t < 4 else f's{sT0}'} offen offset:{1024 * (t & 3)} sc1")
e(f"buffer_load_dwordx2 {vr(226, 2)}, v{vT1}, {srd(sXI)}, s{sA3} offen sc1")
for i in range(2): e(f"buffer_load_dwordx4 {vr(112 + 4 * i)}, v{vT0}, {srd(sXI)}, s{sA2} offen offset:{1024 * i} sc1")
e(f"s_mul_i32 s{sA0}, s{sHALF}, {56 * 1024}"); e(f"s_mul_i32 s{sA1}, s3, {14 * 1024}"); e(f"s_add_u32 s{sA0}, s{sA0}, s{sA1}")
e(f"s_lshl_b32 s{sA2}, s3, 12"); e(f"s_add_u32 s{sA2}, s{sA2}, {112 * 1024}")
e(f"s_cmp_eq_u32 s{sHALF}, 0"); e(f"s_cselect_b32 s{sA2}, s{sA2}, {OOB}")
e("s_waitcnt vmcnt(11)")
stamp(4)
weights(f"-v{NM}", 229, 224)
for t in range(8):
    e(f"s_waitcnt vmcnt({10 - t})")
    merge_frag(8 * t, 64 + 4 * t, vKB, 1024 * t)
e("s_waitcnt vmcnt(0)")
weights("v120", 121, 226)
for i in range(2): merge_frag(96 + 8 * i, 112 + 4 * i, vW9, 1024 * i)
stamp(3, 4)
YA, YD = 0, 40
e("s_waitcnt lgkmcnt(0)"); e("s_barrier")
stamp(4)
def bread(t): return [f"ds_read_b128 {ar(32 * X + 4 * t)}, v{vSP} offset:{8192 * X + 1024 * t}" for X in range(5)]
for x in bread(0) + bread(1): e(x)
vm.q = []
fill = []
dmaq = []
AFc = AF + ['a160', 'a192', 'a224']
def popfill():
    f = fill.pop(0)
    if f[0] > len(A): e("s_nop 7")
    eg(f[1])
for c in range(7):
    if c < 3: dmaq += dma_wo8(4 + c)
    if c in (3, 4, 5):
        assert not dmaq
        e(f"s_waitcnt vmcnt({vm.wait({f'o{c+1}'})})"); e("s_barrier")
        if c == 3: stamp(4)
        rd = wo_reads(vWB if c < 5 else vWC, AFc[c + 1], SLOT if c == 4 else 0)
        fill[:] = [(0, ([x], None)) for x in rd[:8]] + fill + [(0, ([x], None)) for x in rd[8:]]
    k = 0
    for t in range(8):
        nb = []
        if c == 0:
            e(f"s_waitcnt lgkmcnt({5 if t < 7 else 0})")
            nb = bread(t + 2) if t + 2 < 8 else []
        if c >= 4 and t == 0:
            need = I(f"{MF} v[0:3], {freg(AFc[c], 0, 32)}, v[0:3], 0", 0).uses
            assert not any(I(y, 0).defs & need for f in fill for y in f[1][0])
        for X in range(5):
            acc = vr(YA + 20 * (c & 1) + 4 * X)
            x = f"{MF} {acc}, {freg(AFc[c], 4 * t)}, {ar(32 * X + 4 * t)}, {'0' if t == 0 else acc}"
            dd = I(x, 0).defs
            while any(I(y, 0).uses & dd for f in fill for y in f[1][0]): popfill()
            e(x); k += 1
            if nb: e(nb.pop(0))
            if dmaq and k % 5 == 2: eg(dmaq.pop(0))
            elif fill and fill[0][0] <= len(A) and c > 0: popfill()
    if c >= 3 and c < 6: e("s_waitcnt lgkmcnt(0)")
    at = len(A) + 9
    for j in range(2):
        src = YA + 20 * (c & 1) + 8 * j; dst = YD + 4 * (2 * (c & 1) + j)
        cv = cvt4(src, dst)
        fill += [(at, (cv[0:2], None)), (at, (cv[2:4], None)),
                 (at, ([f"s_add_u32 s{sT1}, s{sA0}, {1024 * (2 * c + j)}", f"buffer_store_dwordx4 {vr(dst)}, v{vT0}, {srd(sY)}, s{sT1} offen sc1"], "y"))]
    src = YA + 20 * (c & 1) + 16; dst = YD + 16 + 2 * (c & 1)
    fill.append((at, ([f"v_cvt_pk_bf16_f32 v{dst}, v{src}, v{src+1}", f"v_cvt_pk_bf16_f32 v{dst+1}, v{src+2}, v{src+3}"], None)))
    if (c & 1) or c == 6:
        fill.append((at, ([f"buffer_store_dwordx4 {vr(YD + 16)}, v{vT0}, {srd(sY)}, s{sA2} offen offset:{1024 * (c >> 1)} sc1"], "y")))
while fill: popfill()
stamp(0, 3)
sPOS, sR, sWP, sO0, sO1 = sA0, sA1, sA2, sA3, sA4
e(f"s_and_b32 s{sPOS}, s{sPI}, 31"); e(f"s_lshl_b32 s{sPOS}, s{sPOS}, 2"); e(f"s_add_u32 s{sPOS}, s{sPOS}, s3")
e(f"s_cmp_ge_u32 s{sPOS}, 112"); e("s_cbranch_scc1 L_t8")
e(f"s_mul_hi_u32 s{sWP}, s{sPOS}, {(2**32 + 13) // 14}")
e(f"s_mul_i32 s{sT0}, s{sWP}, 14"); e(f"s_sub_u32 s{sT0}, s{sPOS}, s{sT0}")
e(f"s_lshr_b32 s{sR}, s{sWP}, 2"); e(f"s_and_b32 s{sWP}, s{sWP}, 3")
e(f"s_lshr_b32 s{sT1}, s{sT0}, 1"); e(f"s_mul_i32 s{sO0}, s{sR}, 3"); e(f"s_add_u32 s{sT1}, s{sT1}, s{sO0}")
e(f"s_cmp_ge_u32 s{sT1}, 7"); e(f"s_cselect_b32 s{sO0}, 7, 0"); e(f"s_sub_u32 s{sT1}, s{sT1}, s{sO0}")
e(f"s_lshl_b32 s{sT1}, s{sT1}, 2"); e(f"s_add_u32 s{sT1}, s{sT1}, s{sWP}"); e(f"s_lshl_b32 s{sT1}, s{sT1}, 5")
e(f"s_and_b32 s{sT0}, s{sT0}, 1"); e(f"s_lshl_b32 s{sO0}, s{sR}, 1"); e(f"s_add_u32 s{sT0}, s{sT0}, s{sO0}")
e(f"s_mul_i32 s{sO0}, s{sT0}, {32 * 896}"); e(f"s_add_u32 s{sO0}, s{sO0}, s{sT1}"); e(f"s_add_u32 s{sO1}, s{sO0}, {16 * 896}")
e("s_branch L_go")
e("L_t8:")
e(f"s_sub_u32 s{sT0}, s{sPOS}, 112"); e(f"s_mov_b32 s{sR}, 0")
e(f"s_lshr_b32 s{sWP}, s{sT0}, 2"); e(f"s_and_b32 s{sT0}, s{sT0}, 3")
e(f"s_lshl_b32 s{sO0}, s{sT0}, 3"); e(f"s_add_u32 s{sO0}, s{sO0}, s{sWP}"); e(f"s_lshl_b32 s{sO0}, s{sO0}, 5"); e(f"s_add_u32 s{sO0}, s{sO0}, {128 * 896}")
e(f"s_add_u32 s{sO1}, s{sO0}, 128")
e(f"s_cmp_eq_u32 s{sT0}, 3"); e(f"s_cselect_b32 s{sO1}, {OOB}, s{sO1}")
e("L_go:")
e(f"s_mul_i32 s{sT0}, s{sB}, {144 * 896}"); mksrd(sOUT, 58, 59, f"s{sT0}", 144 * 896)
e(f"s_lshl_b32 s{sT0}, s{sB}, 21"); e(f"s_lshl_b32 s{sT1}, s{sPOS}, 10"); e(f"s_add_u32 s{sT0}, s{sT0}, s{sT1}"); mksrd(sYI, 62, 63, f"s{sT0}", 15 * YSZ + 1024)
e(f"s_lshl_b32 s{sT0}, s{sB}, 21"); e(f"s_add_u32 s{sT0}, s{sT0}, {XOFF}"); mksrd(sXI, 62, 63, f"s{sT0}", 32 * 65536)
e(f"s_lshl_b32 s{sT0}, s{sR}, 16"); e(f"s_lshl_b32 s{sT1}, s{sWP}, 7"); e(f"s_add_u32 s{sEV}, s{sT0}, s{sT1}"); e(f"s_add_u32 s{sEV}, s{sEV}, {FLO}")
e(f"v_and_b32 v{vVB}, 15, v{vL}"); e(f"v_mul_u32_u24 v{vKB}, 896, v{vVB}"); e(f"v_lshlrev_b32 v{vVB}, 17, v{vVB}")
e(f"v_lshrrev_b32 v{vT1}, 4, v{vL}"); e(f"v_lshl_add_u32 v{vKB}, v{vT1}, 3, v{vKB}")
e(f"v_mov_b32 v{vTP}, 2")
e("s_waitcnt vmcnt(0)")
e(f"buffer_store_dword v{vTP}, v{vF0}, {srd(sXO)}, s{sFL} offen sc1")
stamp(0, 3)
spin("L_rpoll", f"buffer_load_dword v{vDW}, v{vVB}, {srd(sXI)}, s{sEV} offen sc1", f"v_cmp_ne_u32 vcc, 2, v{vDW}")
stamp(0)
for i in range(16):
    e(f"s_mov_b32 s{sT0}, {i * YSZ}")
    e(f"buffer_load_dwordx4 {vr(64 + 4 * i)}, v{vT0}, {srd(sYI)}, s{sT0} offen sc1")
AC = 0
for i in range(16):
    e(f"s_waitcnt vmcnt({15 - i})")
    for j in range(4):
        y = 64 + 4 * i + j
        if i == 0:
            e(f"v_lshlrev_b32 v{AC + 2 * j}, 16, v{y}"); e(f"v_and_b32 v{AC + 1 + 2 * j}, 0xffff0000, v{y}")
        else:
            u = 12 + 2 * (j & 1)
            e(f"v_lshlrev_b32 v{u}, 16, v{y}"); e(f"v_and_b32 v{u+1}, 0xffff0000, v{y}")
            e(f"v_pk_add_f32 {vr(AC + 2 * j, 2)}, {vr(AC + 2 * j, 2)}, {vr(u, 2)}")
for j in range(4): e(f"v_cvt_pk_bf16_f32 v{16 + j}, v{AC + 2 * j}, v{AC + 1 + 2 * j}")
e(f"buffer_store_dwordx2 v[16:17], v{vKB}, {srd(sOUT)}, s{sO0} offen")
e(f"buffer_store_dwordx2 v[18:19], v{vKB}, {srd(sOUT)}, s{sO1} offen")
if P['stamps']:
    e("s_waitcnt vmcnt(0)")
    stamp(0, 3, 4)
    e("s_waitcnt lgkmcnt(0)")
    e("s_cmp_lg_u32 s3, 0"); e("s_cbranch_scc1 L_done")
    if P['diag'] >= 0:
        e("L_spin:"); e("s_memrealtime s[84:85]"); e("s_waitcnt lgkmcnt(0)"); e(f"s_sub_u32 s84, s84, s{64 + 2 * P['diag']}")
        e("s_cmp_lt_u32 s84, 9000"); e("s_cbranch_scc1 L_spin")
    e("s_lshl_b32 s86, s2, 6"); e(f"s_add_u32 s86, s86, {WS - 256 * 64}")
    e("s_add_u32 s92, s62, s86"); e("s_addc_u32 s93, s63, 0"); e("s_mov_b32 s94, 64"); e("s_mov_b32 s95, 0x20000")
    e(f"v_lshlrev_b32 v{vT0}, 6, v{vL}")
    for i in range(nstamp[0]):
        e(f"v_mov_b32 v0, s{64 + 2 * i}"); e(f"v_mov_b32 v1, s{65 + 2 * i}")
        e(f"buffer_store_dwordx2 v[0:1], v{vT0}, s[92:95], 0 offen offset:{8 * i}"); e("s_nop 1")
e("L_done:"); e("s_endpgm")
for R in rare_blocks:
    for x in R: e(x)
e("L_codeend:")

e('.section .rodata,"a"')
e(".p2align 6"); e(f".amdhsa_kernel {KN}")
e(f"  .amdhsa_next_free_vgpr 512"); e("  .amdhsa_next_free_sgpr 102"); e(f"  .amdhsa_accum_offset 256")
e("  .amdhsa_group_segment_fixed_size 0"); e("  .amdhsa_kernarg_size 64"); e("  .amdhsa_user_sgpr_count 2")
e("  .amdhsa_user_sgpr_kernarg_segment_ptr 1"); e("  .amdhsa_system_sgpr_workgroup_id_x 1"); e(".end_amdhsa_kernel")

text = "\n".join(A) + "\n"
if P['kvfix']: text = text.replace(" nt lds", " lds")
open(P['out'], "w").write(text)
hz = check(text)
for x in hz[:40]: print(x)
print(len(hz), "hazards;", len(A), "lines")
```
